```python
import torch

def _softmax(x, axis=-1):
    return torch.softmax(x, dim=axis)
def _gelu(x):
    return torch.nn.functional.gelu(x, approximate="tanh")
def _silu(x):
    return torch.nn.functional.silu(x)
def _sigmoid(x):
    return torch.sigmoid(x)
def _layernorm(x, axis=-1, eps=1e-5):
    m = x.mean(dim=axis, keepdim=True)
    v = x.var(dim=axis, keepdim=True, unbiased=False)
    return (x - m) / torch.sqrt(v + eps)
def _scatter_add(tgt, idx, src, axis=0):
    return tgt.clone().index_add_(axis, idx, src)
def _segment_sum(src, seg, n):
    out = torch.zeros((n,) + src.shape[1:], dtype=src.dtype)
    return out.index_add_(0, seg, src)
def _pad(x, pw):
    flat = tuple(v for pair in reversed(pw) for v in pair)
    return torch.nn.functional.pad(x, flat)

kernel_name = 'standalone__softmax_full_bidir__decode'

def setup_inputs():

    _w = (lambda a: (lambda t: t.to(torch.bfloat16) if t.is_floating_point() else t)(torch.as_tensor(a)))
    B, H, Sq, Skv, Dh = 4, 32, 1, 4096, 192
    return {
        "q": _w((lambda *s: torch.randn(*s, dtype=torch.bfloat16) * 0.8)(B, H, Sq, Dh)),
        "k": _w((lambda *s: torch.randn(*s, dtype=torch.bfloat16) * 0.8)(B, H, Skv, Dh)),
        "v": _w((lambda *s: torch.randn(*s, dtype=torch.bfloat16) * 0.05)(B, H, Skv, Dh)),
    }

def reference(q, k, v):
    scale = q.shape[-1] ** -0.5
    scores = torch.einsum('bhqd,bhkd->bhqk', q, k) * scale
    attn = _softmax(scores, axis=-1)
    return torch.einsum('bhqk,bhkd->bhqd', attn, v)
```

```python
import sys, json, math
from asmlib import *

NAME = "standalone__softmax_full_bidir__decode_kernel"
HDR = """; Kernarg layout for this problem (48 bytes, ptrs only, base s[0:1]):
"""

def gen(name=NAME, S=2, W=8, T=1, R=4, pat="group", flags="nt", vg=None, stamp=False):
    NWG = 128 * S
    keys_wg = 4096 // S
    groups_wg = keys_wg // 8
    gpw = groups_wg // W
    assert gpw % T == 0 and R % 2 == 0
    ntiles = gpw // T
    TP = R // 2
    assert ntiles % TP == 0
    niter = ntiles // TP
    G = 3072
    if pat == "group":
        A, C, Bs = G, W * G, T * W * G
    elif pat == "unit":
        A, C, Bs = T * G, G, T * W * G
    elif pat == "contig":
        A, C, Bs = gpw * G, G, T * G
    chunk = keys_wg * 384
    nl = 3 * T
    cscale = (192 ** -0.5) * math.log2(math.e)
    import struct
    cbits = struct.unpack("<I", struct.pack("<f", cscale))[0]
    vOFF = 1
    vLANE = 2
    vT0, vT1, vT2, vT3 = 3, 4, 5, 6
    vM = 7
    vL = 8
    vAL = 9
    vMC = 10
    vQ = 12
    vMASK = 24
    vD = 28
    vS = 40
    vS2 = vS + T
    vS3 = vS2 + T
    vA = (vS3 + T + 3) // 4 * 4
    vB = vA + 4 * T
    nv = vB + R * nl * 4
    SK, SV = 16, 20
    L = []
    e = L.append
    lab = lambda s: f"L_{s}_{name}"
    e(f"  s_cmp_ge_u32 s2, {NWG}")
    e(f"  s_cbranch_scc1 {lab('end')}")
    e("  s_load_dwordx4 s[4:7], s[0:1], 0      ; q, k")
    e("  s_load_dwordx4 s[8:11], s[0:1], 16    ; v, out")
    e("  s_load_dwordx4 s[12:15], s[0:1], 32")
    if stamp:
        e("  s_memrealtime s[40:41]")
    e(f"  v_lshrrev_b32 v{vT0}, 6, v0        ; wave")
    e(f"  v_and_b32 v{vLANE}, 63, v0           ; lane")
    e(f"  v_lshrrev_b32 v{vT1}, 3, v{vLANE}")
    e(f"  v_mul_u32_u24 v{vT1}, 384, v{vT1}")
    e(f"  v_and_b32 v{vT2}, 7, v{vLANE}        ; chunk c")
    e(f"  v_lshlrev_b32 v{vT3}, 4, v{vT2}      ; c*16")
    e(f"  v_add_u32 v{vT1}, v{vT1}, v{vT3}")
    e(f"  s_mov_b32 s28, {A}")
    e(f"  v_mul_lo_u32 v{vT0}, v{vT0}, s28")
    e(f"  v_add_u32 v{vOFF}, v{vT0}, v{vT1}           ; voffset")
    lg = S.bit_length() - 1
    assert (1 << lg) == S
    e(f"  s_lshr_b32 s29, s2, {lg}        ; head")
    e(f"  s_and_b32 s30, s2, {S-1}        ; split")
    e(f"  s_mul_i32 s31, s29, 384          ; q offset")
    e(f"  s_mul_i32 s32, s2, {chunk}")
    e(f"  s_mul_hi_u32 s33, s2, {chunk}")
    e("  s_waitcnt lgkmcnt(0)")
    e("  s_add_u32 s24, s4, s31")
    e("  s_addc_u32 s25, s5, 0")
    e("  s_mov_b32 s26, 384")
    e("  s_mov_b32 s27, 0x20000")
    e(f"  s_add_u32 s{SK}, s6, s32")
    e(f"  s_addc_u32 s{SK+1}, s7, s33")
    e(f"  s_mov_b32 s{SK+2}, {chunk}")
    e(f"  s_mov_b32 s{SK+3}, 0x20000")
    for s in range(3):
        e(f"  buffer_load_dwordx4 v[{vQ+4*s}:{vQ+4*s+3}], v{vT3}, s[24:27], 0 offen offset:{128*s}")
    e(f"  s_add_u32 s{SV}, s8, s32")
    e(f"  s_addc_u32 s{SV+1}, s9, s33")
    e(f"  s_mov_b32 s{SV+2}, {chunk}")
    e(f"  s_mov_b32 s{SV+3}, 0x20000")

    def buf(slot, t, s):
        return vB + (slot * nl + t * 3 + s) * 4
    def issue(slot, tile_add):
        srd = SK if slot % 2 == 0 else SV
        for t in range(T):
            e(f"  s_add_u32 s35, s34, {tile_add * Bs + t * C}")
            for s in range(3):
                r = buf(slot, t, s)
                e(f"  buffer_load_dwordx4 v[{r}:{r+3}], v{vOFF}, s[{srd}:{srd+3}], s35 offen offset:{128*s} {flags}")
    e("  s_mov_b32 s34, 0")
    for r in range(R):
        issue(r, r // 2)
    for i in range(4):
        e(f"  v_mov_b32 v{vMASK+i}, 0")
    e(f"  v_and_b32 v{vT0}, 1, v{vT2}")
    e(f"  v_lshlrev_b32 v{vT0}, 4, v{vT0}       ; 16*(c&1)")
    e(f"  v_mov_b32 v{vT1}, 0xffff")
    e(f"  v_lshlrev_b32 v{vT1}, v{vT0}, v{vT1}")
    e(f"  v_lshrrev_b32 v{vT0}, 1, v{vT2}       ; c>>1")
    for i in range(4):
        e(f"  v_cmp_eq_u32 vcc, {i}, v{vT0}")
        e(f"  s_nop 1")
        e(f"  v_cndmask_b32 v{vMASK+i}, v{vMASK+i}, v{vT1}, vcc")
    for i in range(12):
        e(f"  v_mov_b32 v{vD+i}, 0")
    e(f"  v_mov_b32 v{vM}, 0xff7fffff")
    e(f"  v_mov_b32 v{vL}, 0")
    e(f"  s_mov_b32 s36, 0x{cbits:08x}      ; scale*log2e")

    def computeK(slot):
        for t in range(T):
            for s in range(3):
                acc = [vS, vS2, vS3][s] + t
                r = buf(slot, t, s)
                for j in range(4):
                    if j == 0:
                        e(f"  v_dot2_f32_bf16 v{acc}, v{r}, v{vQ+4*s}, 0")
                    else:
                        e(f"  v_dot2_f32_bf16 v{acc}, v{r+j}, v{vQ+4*s+j}, v{acc}")
        e("  s_nop 2")
        for t in range(T):
            e(f"  v_add_f32 v{vS2+t}, v{vS2+t}, v{vS3+t}")
        for t in range(T):
            e(f"  v_add_f32 v{vS+t}, v{vS+t}, v{vS2+t}")
        for mod in ["quad_perm:[1,0,3,2]", "quad_perm:[2,3,0,1]", "row_half_mirror"]:
            e("  s_nop 1")
            for t in range(T):
                e(f"  v_add_f32_dpp v{vS+t}, v{vS+t}, v{vS+t} {mod} row_mask:0xf bank_mask:0xf")
        e(f"  v_max_f32 v{vT0}, v{vS}, v{vM}")
        for t in range(1, T):
            e(f"  v_max_f32 v{vT0}, v{vT0}, v{vS+t}")
        e("  s_nop 1")
        e(f"  v_max_f32_dpp v{vT0}, v{vT0}, v{vT0} row_ror:8 row_mask:0xf bank_mask:0xf")
        e(f"  v_mov_b32 v{vT1}, v{vT0}")
        e("  s_nop 1")
        e(f"  v_permlane16_swap_b32 v{vT0}, v{vT1}")
        e(f"  v_max_f32 v{vT0}, v{vT0}, v{vT1}")
        e(f"  v_mov_b32 v{vT1}, v{vT0}")
        e("  s_nop 1")
        e(f"  v_permlane32_swap_b32 v{vT0}, v{vT1}")
        e(f"  v_max_f32 v{vT0}, v{vT0}, v{vT1}       ; m_new")
        e(f"  v_sub_f32 v{vAL}, v{vM}, v{vT0}")
        e(f"  v_mul_f32 v{vAL}, s36, v{vAL}")
        e(f"  v_exp_f32 v{vAL}, v{vAL}")
        e(f"  v_mov_b32 v{vM}, v{vT0}")
        e(f"  v_mul_f32 v{vMC}, s36, v{vT0}")
        for t in range(T):
            e(f"  v_fma_f32 v{vS+t}, v{vS+t}, s36, -v{vMC}")
        for t in range(T):
            e(f"  v_exp_f32 v{vS+t}, v{vS+t}")
        e(f"  v_mul_f32 v{vL}, v{vL}, v{vAL}")
        for i in range(12):
            e(f"  v_mul_f32 v{vD+i}, v{vD+i}, v{vAL}")
        for t in range(T):
            e(f"  v_add_f32 v{vL}, v{vL}, v{vS+t}")
        for t in range(T):
            e(f"  v_cvt_pk_bf16_f32 v{vS2+t}, v{vS+t}, v{vS+t}")
        for t in range(T):
            for i in range(4):
                e(f"  v_and_b32 v{vA+4*t+i}, v{vS2+t}, v{vMASK+i}")
    def computeV(slot):
        e("  s_nop 1")
        for t in range(T):
            for s in range(3):
                r = buf(slot, t, s)
                e(f"  v_mfma_f32_16x16x32_bf16 v[{vD+4*s}:{vD+4*s+3}], v[{vA+4*t}:{vA+4*t+3}], v[{r}:{r+3}], v[{vD+4*s}:{vD+4*s+3}]")
    def compute(slot):
        if slot % 2 == 0: computeK(slot)
        else: computeV(slot)

    extra = 0
    if niter > 1:
        e(f"  s_mov_b32 s37, {niter - 1}")
        e(f"{lab('loop')}:")
        e(f"  s_add_u32 s34, s34, {TP * Bs}")
        for r in range(R):
            e(f"  s_waitcnt vmcnt({min(63, (R - 1) * nl)})")
            compute(r)
            issue(r, r // 2)
        e("  s_sub_u32 s37, s37, 1")
        e("  s_cmp_lg_u32 s37, 0")
        e(f"  s_cbranch_scc1 {lab('loop')}")
    for r in range(R):
        e(f"  s_waitcnt vmcnt({min(63, (R - 1 - r) * nl)})")
        compute(r)

    e("  s_nop 1")
    e(f"  v_add_f32_dpp v{vL}, v{vL}, v{vL} row_ror:8 row_mask:0xf bank_mask:0xf")
    e(f"  v_mov_b32 v{vT1}, v{vL}")
    e("  s_nop 1")
    e(f"  v_permlane16_swap_b32 v{vL}, v{vT1}")
    e(f"  v_add_f32 v{vL}, v{vL}, v{vT1}")
    e(f"  v_mov_b32 v{vT1}, v{vL}")
    e("  s_nop 1")
    e(f"  v_permlane32_swap_b32 v{vL}, v{vT1}")
    e(f"  v_add_f32 v{vL}, v{vL}, v{vT1}")
    MLB = W * 1536
    e(f"  v_lshrrev_b32 v{vT0}, 6, v0          ; wave")
    e(f"  v_and_b32 v{vT1}, 15, v{vLANE}        ; n")
    e(f"  v_lshrrev_b32 v{vT2}, 4, v{vLANE}     ; rg")
    e(f"  v_lshrrev_b32 v{vT3}, 3, v{vT1}       ; half = n>>3")
    e(f"  v_lshrrev_b32 v{vS}, 1, v{vT2}        ; rg>>1")
    e(f"  v_cmp_eq_u32 vcc, v{vT3}, v{vS}")
    e(f"  v_lshl_add_u32 v{vS}, v{vT0}, 1, v{vT3}   ; w*2+half")
    e(f"  v_mul_u32_u24 v{vS}, 768, v{vS}")
    e(f"  v_and_b32 v{vT1}, 7, v{vT1}")
    e(f"  v_lshlrev_b32 v{vT1}, 5, v{vT1}       ; (n&7)*32 bytes")
    e(f"  v_and_b32 v{vT2}, 1, v{vT2}")
    e(f"  v_lshlrev_b32 v{vT2}, 4, v{vT2}")
    e(f"  v_add3_u32 v{vS}, v{vS}, v{vT1}, v{vT2}")
    e(f"  v_lshlrev_b32 v{vT0}, 3, v{vT0}")
    e(f"  v_add_u32 v{vT0}, {MLB}, v{vT0}")
    e(f"  v_mov_b32 v{vT2}, v{vM}")
    e(f"  v_mov_b32 v{vT3}, v{vL}")
    assert vT2 % 2 == 1 or True
    e(f"  v_mov_b32 v10, v{vM}")
    e(f"  v_mov_b32 v11, v{vL}")
    e(f"  ds_write_b64 v{vT0}, v[10:11]")
    e("  s_and_saveexec_b64 s[38:39], vcc")
    e("  s_nop 4")
    for s in range(3):
        e(f"  ds_write_b128 v{vS}, v[{vD+4*s}:{vD+4*s+3}] offset:{256*s}")
    e("  s_mov_b64 exec, s[38:39]")
    e("  s_waitcnt lgkmcnt(0)")
    e("  s_barrier")
    e(f"  v_readfirstlane_b32 s38, v0")
    e("  s_nop 3")
    e("  s_cmp_ge_u32 s38, 64")
    e(f"  s_cbranch_scc1 {lab('end')}")
    X = vB
    e(f"  v_mov_b32 v{vT0}, {MLB}")
    for w in range(W):
        e(f"  ds_read_b64 v[{X+2*w}:{X+2*w+1}], v{vT0} offset:{8*w}")
    OB = X + 2 * W
    OB = (OB + 3) // 4 * 4
    e(f"  v_min_u32 v{vT1}, 47, v{vLANE}")
    e(f"  v_lshlrev_b32 v{vT1}, 4, v{vT1}      ; lane*16")
    assert OB + 8 * W <= nv or True
    nvneed = OB + 8 * W
    for w in range(W):
        for h in range(2):
            r = OB + (w * 2 + h) * 4
            e(f"  ds_read_b128 v[{r}:{r+3}], v{vT1} offset:{(w*2+h)*768}")
    e("  s_waitcnt lgkmcnt(0)")
    e(f"  v_mov_b32 v{vM}, v{X}")
    for w in range(1, W):
        e(f"  v_max_f32 v{vM}, v{vM}, v{X+2*w}")
    for w in range(W):
        e(f"  v_sub_f32 v{X+2*w}, v{X+2*w}, v{vM}")
        e(f"  v_mul_f32 v{X+2*w}, s36, v{X+2*w}")
        e(f"  v_exp_f32 v{X+2*w}, v{X+2*w}")
    e("  s_nop 0")
    e(f"  v_mul_f32 v{vL}, v{X}, v{X+1}")
    for w in range(1, W):
        e(f"  v_fmac_f32 v{vL}, v{X+2*w}, v{X+2*w+1}")
    for j in range(4):
        e(f"  v_mov_b32 v{vD+j}, 0")
    for w in range(W):
        for j in range(4):
            e(f"  v_add_f32 v{OB+w*8+j}, v{OB+w*8+j}, v{OB+w*8+4+j}")
        for j in range(4):
            e(f"  v_fmac_f32 v{vD+j}, v{X+2*w}, v{OB+w*8+j}")
    if S > 1:
        e(f"  s_lshl_b32 s38, s29, {lg + 10}      ; head*S*1024")
        e("  s_add_u32 s24, s14, s38")
        e("  s_addc_u32 s25, s15, 0")
        e(f"  s_mov_b32 s26, {S * 1024}")
        e("  s_mov_b32 s27, 0x20000")
        e(f"  v_cmp_eq_u32 vcc, 48, v{vLANE}")
        e("  s_nop 1")
        e(f"  v_cndmask_b32 v{vD+4}, v{vD}, v{vM}, vcc")
        e(f"  v_cndmask_b32 v{vD+5}, v{vD+1}, v{vL}, vcc")
        e(f"  v_mov_b32 v{vD+6}, v{vD+2}")
        e(f"  v_mov_b32 v{vD+7}, v{vD+3}")
        e(f"  v_lshlrev_b32 v{vT0}, 4, v{vLANE}")
        e(f"  s_lshl_b32 s39, s30, 10            ; split*1024")
        e(f"  v_cmp_gt_u32 vcc, 49, v{vLANE}")
        e("  s_and_saveexec_b64 s[42:43], vcc")
        e(f"  buffer_store_dwordx4 v[{vD+4}:{vD+7}], v{vT0}, s[24:27], s39 offen sc1")
        e("  s_mov_b64 exec, s[42:43]")
        e("  s_waitcnt vmcnt(0)")
        e("  s_lshr_b32 s38, s29, 1")
        e("  s_lshl_b32 s38, s38, 2")
        e("  s_and_b32 s39, s29, 1")
        e("  s_lshl_b32 s39, s39, 4          ; shift")
        e("  s_lshl_b32 s44, 1, s39")
        e("  s_mov_b32 s48, s12")
        e("  s_mov_b32 s49, s13")
        e("  s_mov_b32 s50, 256")
        e("  s_mov_b32 s51, 0x20000")
        e(f"  v_mov_b32 v{vT2}, s44")
        e(f"  v_mov_b32 v{vT3}, s38")
        e(f"  v_cmp_eq_u32 vcc, 0, v{vLANE}")
        e("  s_and_saveexec_b64 s[42:43], vcc")
        e(f"  buffer_atomic_add v{vT2}, v{vT3}, s[48:51], 0 offen sc0 sc1")
        e("  s_waitcnt vmcnt(0)")
        e("  s_mov_b64 exec, s[42:43]")
        e(f"  v_readfirstlane_b32 s44, v{vT2}")
        e("  s_nop 3")
        e("  s_lshr_b32 s44, s44, s39")
        e("  s_and_b32 s44, s44, 0xffff")
        e(f"  s_cmp_lg_u32 s44, {S-1}")
        e(f"  s_cbranch_scc1 {lab('fin')}")
        e(f"  v_mov_b32 v{vT0}, 768")
        for s in range(S):
            e(f"  buffer_load_dwordx4 v[{X+8*s}:{X+8*s+3}], v{vT1}, s[24:27], 0 offen offset:{s*1024} sc1" if s * 1024 < 4096 else None) if s * 1024 < 4096 else None
            if s * 1024 >= 4096:
                e(f"  s_mov_b32 s39, {s*1024}")
                e(f"  buffer_load_dwordx4 v[{X+8*s}:{X+8*s+3}], v{vT1}, s[24:27], s39 offen sc1")
                e(f"  buffer_load_dwordx2 v[{X+8*s+4}:{X+8*s+5}], v{vT0}, s[24:27], s39 offen sc1")
            else:
                e(f"  buffer_load_dwordx2 v[{X+8*s+4}:{X+8*s+5}], v{vT0}, s[24:27], 0 offen offset:{s*1024} sc1")
        nvneed = max(nvneed, X + 8 * S)
        e("  s_waitcnt vmcnt(0)")
        e(f"  v_mov_b32 v{vM}, v{X+4}")
        for s in range(1, S):
            e(f"  v_max_f32 v{vM}, v{vM}, v{X+8*s+4}")
        for s in range(S):
            e(f"  v_sub_f32 v{X+8*s+4}, v{X+8*s+4}, v{vM}")
            e(f"  v_mul_f32 v{X+8*s+4}, s36, v{X+8*s+4}")
            e(f"  v_exp_f32 v{X+8*s+4}, v{X+8*s+4}")
        e("  s_nop 0")
        e(f"  v_mul_f32 v{vL}, v{X+4}, v{X+5}")
        for j in range(4):
            e(f"  v_mul_f32 v{vD+j}, v{X+4}, v{X+j}")
        for s in range(1, S):
            e(f"  v_fmac_f32 v{vL}, v{X+8*s+4}, v{X+8*s+5}")
            for j in range(4):
                e(f"  v_fmac_f32 v{vD+j}, v{X+8*s+4}, v{X+8*s+j}")
    e(f"  v_rcp_f32 v{vL}, v{vL}")
    e("  s_nop 0")
    for j in range(4):
        e(f"  v_mul_f32 v{vD+j}, v{vD+j}, v{vL}")
    e(f"  v_cvt_pk_bf16_f32 v{vD+4}, v{vD}, v{vD+1}")
    e(f"  v_cvt_pk_bf16_f32 v{vD+5}, v{vD+2}, v{vD+3}")
    e("  s_add_u32 s24, s10, s31")
    e("  s_addc_u32 s25, s11, 0")
    e("  s_mov_b32 s26, 384")
    e("  s_mov_b32 s27, 0x20000")
    e(f"  v_lshlrev_b32 v{vT0}, 3, v{vLANE}")
    e(f"  buffer_store_dwordx2 v[{vD+4}:{vD+5}], v{vT0}, s[24:27], 0 offen")
    e(f"{lab('fin')}:")
    if stamp:
        e("  s_waitcnt vmcnt(0)")
        e("  s_memrealtime s[42:43]")
        e("  s_waitcnt lgkmcnt(0)")
        e(f"  v_cmp_eq_u32 vcc, 0, v0")
        e("  s_and_saveexec_b64 s[44:45], vcc")
        e("  s_lshl_b32 s16, s2, 4")
        e("  s_add_u32 s16, s16, 0x28000000")
        e("  s_add_u32 s14, s14, s16")
        e("  s_addc_u32 s15, s15, 0")
        e("  v_mov_b32 v8, s40")
        e("  v_mov_b32 v9, s41")
        e("  v_mov_b32 v10, s42")
        e("  v_mov_b32 v11, s43")
        e("  v_mov_b32 v12, 0")
        e("  global_store_dwordx4 v12, v[8:11], s[14:15]")
    e(f"{lab('end')}:")
    e("  s_endpgm")
    L = [x for x in L if x is not None]
    nv = max(nv, nvneed)
    if vg: nv = max(nv, vg)
    lds = W * 1536 + W * 8
    return head(name) + "\n".join(L) + "\n" + kd(name, nv, 56), (name, nv, 56, W * 64), (NWG, W * 64, lds)

if __name__ == "__main__":
    if sys.argv[1] == "--final":
        v = json.loads(sys.argv[3])
        t, k, (g, b, lds) = gen(NAME, **v)
        text = HDR + f"; @launch grid=({g},1,1) block=({b},1,1) lds={lds}\n" + '.amdgcn_target "amdgcn-amd-amdhsa--gfx950"\n' + t
        open(sys.argv[2], "w").write(text)
        print("vgprs", k[1])
    else:
        variants = json.loads(sys.argv[2])
        text = '.amdgcn_target "amdgcn-amd-amdhsa--gfx950"\n'
        ks = []; specs = []
        for i, v in enumerate(variants):
            nm = v.pop("name", f"k{i}") + "_kernel"
            t, k, (g, b, lds) = gen(nm, **v)
            text += t; ks.append(k); specs.append(f"{nm},{g},{b},{lds}")
        co = build(sys.argv[1], text, ks)
        print(" ".join(f"{co.split('/')[-1]}:{s}" for s in specs))
```

```python
import sys, json, math
from asmlib import *

NAME = "standalone__softmax_full_bidir__decode_kernel"
HDR = """; Kernarg layout for this problem (48 bytes, ptrs only, base s[0:1]):
"""

def gen(name=NAME, S=2, W=8, T=1, R=4, pat="group", flags="nt", vg=None, stamp=False, rep=1):
    NWG = 128 * S
    keys_wg = 4096 // S
    groups_wg = keys_wg // 8
    gpw = groups_wg // W
    assert gpw % T == 0 and R % 2 == 0
    ntiles = gpw // T
    TP = R // 2
    assert ntiles % TP == 0
    niter = ntiles // TP
    G = 3072
    if pat == "group":
        A, C, Bs = G, W * G, T * W * G
    elif pat == "unit":
        A, C, Bs = T * G, G, T * W * G
    elif pat == "contig":
        A, C, Bs = gpw * G, G, T * G
    chunk = keys_wg * 384
    nl = 3 * T
    cscale = (192 ** -0.5) * math.log2(math.e)
    import struct
    cbits = struct.unpack("<I", struct.pack("<f", cscale))[0]
    vOFF = 1
    vLANE = 2
    vT0, vT1, vT2, vT3 = 3, 4, 5, 6
    vM = 7
    vL = 8
    vAL = 9
    vMC = 10
    vQ = 12
    vMASK = 24
    vD = 28
    vS = 40
    vS2 = vS + T
    vS3 = vS2 + T
    vA = (vS3 + T + 3) // 4 * 4
    vB = vA + 4 * T
    nv = vB + R * nl * 4
    SK, SV = 16, 20
    L = []
    e = L.append
    lab = lambda s: f"L_{s}_{name}"
    e(f"  s_cmp_ge_u32 s2, {NWG}")
    e(f"  s_cbranch_scc1 {lab('end')}")
    e("  s_load_dwordx4 s[4:7], s[0:1], 0      ; q, k")
    e("  s_load_dwordx4 s[8:11], s[0:1], 16    ; v, out")
    e("  s_load_dwordx4 s[12:15], s[0:1], 32")
    if stamp:
        e("  s_memrealtime s[40:41]")
    e(f"  v_lshrrev_b32 v{vT0}, 6, v0        ; wave")
    e(f"  v_and_b32 v{vLANE}, 63, v0           ; lane")
    e(f"  v_lshrrev_b32 v{vT1}, 3, v{vLANE}")
    e(f"  v_mul_u32_u24 v{vT1}, 384, v{vT1}")
    e(f"  v_and_b32 v{vT2}, 7, v{vLANE}        ; chunk c")
    e(f"  v_lshlrev_b32 v{vT3}, 4, v{vT2}      ; c*16")
    e(f"  v_add_u32 v{vT1}, v{vT1}, v{vT3}")
    e(f"  s_mov_b32 s28, {A}")
    e(f"  v_mul_lo_u32 v{vT0}, v{vT0}, s28")
    e(f"  v_add_u32 v{vOFF}, v{vT0}, v{vT1}           ; voffset")
    lg = S.bit_length() - 1
    assert (1 << lg) == S
    e(f"  s_lshr_b32 s29, s2, {lg}        ; head")
    e(f"  s_and_b32 s30, s2, {S-1}        ; split")
    e(f"  s_mul_i32 s31, s29, 384          ; q offset")
    e(f"  s_mul_i32 s32, s2, {chunk}")
    e(f"  s_mul_hi_u32 s33, s2, {chunk}")
    e("  s_waitcnt lgkmcnt(0)")
    e("  s_add_u32 s24, s4, s31")
    e("  s_addc_u32 s25, s5, 0")
    e("  s_mov_b32 s26, 384")
    e("  s_mov_b32 s27, 0x20000")
    e(f"  s_add_u32 s{SK}, s6, s32")
    e(f"  s_addc_u32 s{SK+1}, s7, s33")
    e(f"  s_mov_b32 s{SK+2}, {chunk}")
    e(f"  s_mov_b32 s{SK+3}, 0x20000")
    for s in range(3):
        e(f"  buffer_load_dwordx4 v[{vQ+4*s}:{vQ+4*s+3}], v{vT3}, s[24:27], 0 offen offset:{128*s}")
    e(f"  s_add_u32 s{SV}, s8, s32")
    e(f"  s_addc_u32 s{SV+1}, s9, s33")
    e(f"  s_mov_b32 s{SV+2}, {chunk}")
    e(f"  s_mov_b32 s{SV+3}, 0x20000")

    def buf(slot, t, s):
        return vB + (slot * nl + t * 3 + s) * 4
    def issue(slot, tile_add):
        srd = SK if slot % 2 == 0 else SV
        for t in range(T):
            e(f"  s_add_u32 s35, s34, {tile_add * Bs + t * C}")
            for s in range(3):
                r = buf(slot, t, s)
                e(f"  buffer_load_dwordx4 v[{r}:{r+3}], v{vOFF}, s[{srd}:{srd+3}], s35 offen offset:{128*s} {flags}")
    if rep > 1:
        e(f"  s_mov_b32 s45, {rep}")
        e(f"{lab('rep')}:")
        e(f"  v_and_b32 v{vT2}, 7, v{vLANE}        ; chunk c")
    e("  s_mov_b32 s34, 0")
    for r in range(R):
        issue(r, r // 2)
    for i in range(4):
        e(f"  v_mov_b32 v{vMASK+i}, 0")
    e(f"  v_and_b32 v{vT0}, 1, v{vT2}")
    e(f"  v_lshlrev_b32 v{vT0}, 4, v{vT0}       ; 16*(c&1)")
    e(f"  v_mov_b32 v{vT1}, 0xffff")
    e(f"  v_lshlrev_b32 v{vT1}, v{vT0}, v{vT1}")
    e(f"  v_lshrrev_b32 v{vT0}, 1, v{vT2}       ; c>>1")
    for i in range(4):
        e(f"  v_cmp_eq_u32 vcc, {i}, v{vT0}")
        e(f"  s_nop 1")
        e(f"  v_cndmask_b32 v{vMASK+i}, v{vMASK+i}, v{vT1}, vcc")
    for i in range(12):
        e(f"  v_mov_b32 v{vD+i}, 0")
    e(f"  v_mov_b32 v{vM}, 0xff7fffff")
    e(f"  v_mov_b32 v{vL}, 0")
    e(f"  s_mov_b32 s36, 0x{cbits:08x}      ; scale*log2e")

    def computeK(slot):
        for t in range(T):
            for s in range(3):
                acc = [vS, vS2, vS3][s] + t
                r = buf(slot, t, s)
                for j in range(4):
                    if j == 0:
                        e(f"  v_dot2_f32_bf16 v{acc}, v{r}, v{vQ+4*s}, 0")
                    else:
                        e(f"  v_dot2_f32_bf16 v{acc}, v{r+j}, v{vQ+4*s+j}, v{acc}")
        e("  s_nop 2")
        for t in range(T):
            e(f"  v_add_f32 v{vS2+t}, v{vS2+t}, v{vS3+t}")
        for t in range(T):
            e(f"  v_add_f32 v{vS+t}, v{vS+t}, v{vS2+t}")
        for mod in ["quad_perm:[1,0,3,2]", "quad_perm:[2,3,0,1]", "row_half_mirror"]:
            e("  s_nop 1")
            for t in range(T):
                e(f"  v_add_f32_dpp v{vS+t}, v{vS+t}, v{vS+t} {mod} row_mask:0xf bank_mask:0xf")
        e(f"  v_max_f32 v{vT0}, v{vS}, v{vM}")
        for t in range(1, T):
            e(f"  v_max_f32 v{vT0}, v{vT0}, v{vS+t}")
        e("  s_nop 1")
        e(f"  v_max_f32_dpp v{vT0}, v{vT0}, v{vT0} row_ror:8 row_mask:0xf bank_mask:0xf")
        e(f"  v_mov_b32 v{vT1}, v{vT0}")
        e("  s_nop 1")
        e(f"  v_permlane16_swap_b32 v{vT0}, v{vT1}")
        e(f"  v_max_f32 v{vT0}, v{vT0}, v{vT1}")
        e(f"  v_mov_b32 v{vT1}, v{vT0}")
        e("  s_nop 1")
        e(f"  v_permlane32_swap_b32 v{vT0}, v{vT1}")
        e(f"  v_max_f32 v{vT0}, v{vT0}, v{vT1}       ; m_new")
        e(f"  v_sub_f32 v{vAL}, v{vM}, v{vT0}")
        e(f"  v_mul_f32 v{vAL}, s36, v{vAL}")
        e(f"  v_exp_f32 v{vAL}, v{vAL}")
        e(f"  v_mov_b32 v{vM}, v{vT0}")
        e(f"  v_mul_f32 v{vMC}, s36, v{vT0}")
        for t in range(T):
            e(f"  v_fma_f32 v{vS+t}, v{vS+t}, s36, -v{vMC}")
        for t in range(T):
            e(f"  v_exp_f32 v{vS+t}, v{vS+t}")
        e(f"  v_mul_f32 v{vL}, v{vL}, v{vAL}")
        for i in range(12):
            e(f"  v_mul_f32 v{vD+i}, v{vD+i}, v{vAL}")
        for t in range(T):
            e(f"  v_add_f32 v{vL}, v{vL}, v{vS+t}")
        for t in range(T):
            e(f"  v_cvt_pk_bf16_f32 v{vS2+t}, v{vS+t}, v{vS+t}")
        for t in range(T):
            for i in range(4):
                e(f"  v_and_b32 v{vA+4*t+i}, v{vS2+t}, v{vMASK+i}")
    def computeV(slot):
        e("  s_nop 1")
        for t in range(T):
            for s in range(3):
                r = buf(slot, t, s)
                e(f"  v_mfma_f32_16x16x32_bf16 v[{vD+4*s}:{vD+4*s+3}], v[{vA+4*t}:{vA+4*t+3}], v[{r}:{r+3}], v[{vD+4*s}:{vD+4*s+3}]")
    def compute(slot):
        if slot % 2 == 0: computeK(slot)
        else: computeV(slot)

    extra = 0
    if niter > 1:
        e(f"  s_mov_b32 s37, {niter - 1}")
        e(f"{lab('loop')}:")
        e(f"  s_add_u32 s34, s34, {TP * Bs}")
        for r in range(R):
            e(f"  s_waitcnt vmcnt({min(63, (R - 1) * nl)})")
            compute(r)
            issue(r, r // 2)
        e("  s_sub_u32 s37, s37, 1")
        e("  s_cmp_lg_u32 s37, 0")
        e(f"  s_cbranch_scc1 {lab('loop')}")
    for r in range(R):
        e(f"  s_waitcnt vmcnt({min(63, (R - 1 - r) * nl)})")
        compute(r)

    if rep > 1:
        e("  s_sub_u32 s45, s45, 1")
        e("  s_cmp_lg_u32 s45, 0")
        e(f"  s_cbranch_scc1 {lab('rep')}")
    e("  s_nop 1")
    e(f"  v_add_f32_dpp v{vL}, v{vL}, v{vL} row_ror:8 row_mask:0xf bank_mask:0xf")
    e(f"  v_mov_b32 v{vT1}, v{vL}")
    e("  s_nop 1")
    e(f"  v_permlane16_swap_b32 v{vL}, v{vT1}")
    e(f"  v_add_f32 v{vL}, v{vL}, v{vT1}")
    e(f"  v_mov_b32 v{vT1}, v{vL}")
    e("  s_nop 1")
    e(f"  v_permlane32_swap_b32 v{vL}, v{vT1}")
    e(f"  v_add_f32 v{vL}, v{vL}, v{vT1}")
    MLB = W * 1536
    e(f"  v_lshrrev_b32 v{vT0}, 6, v0          ; wave")
    e(f"  v_and_b32 v{vT1}, 15, v{vLANE}        ; n")
    e(f"  v_lshrrev_b32 v{vT2}, 4, v{vLANE}     ; rg")
    e(f"  v_lshrrev_b32 v{vT3}, 3, v{vT1}       ; half = n>>3")
    e(f"  v_lshrrev_b32 v{vS}, 1, v{vT2}        ; rg>>1")
    e(f"  v_cmp_eq_u32 vcc, v{vT3}, v{vS}")
    e(f"  v_lshl_add_u32 v{vS}, v{vT0}, 1, v{vT3}   ; w*2+half")
    e(f"  v_mul_u32_u24 v{vS}, 768, v{vS}")
    e(f"  v_and_b32 v{vT1}, 7, v{vT1}")
    e(f"  v_lshlrev_b32 v{vT1}, 5, v{vT1}       ; (n&7)*32 bytes")
    e(f"  v_and_b32 v{vT2}, 1, v{vT2}")
    e(f"  v_lshlrev_b32 v{vT2}, 4, v{vT2}")
    e(f"  v_add3_u32 v{vS}, v{vS}, v{vT1}, v{vT2}")
    e(f"  v_lshlrev_b32 v{vT0}, 3, v{vT0}")
    e(f"  v_add_u32 v{vT0}, {MLB}, v{vT0}")
    e(f"  v_mov_b32 v{vT2}, v{vM}")
    e(f"  v_mov_b32 v{vT3}, v{vL}")
    assert vT2 % 2 == 1 or True
    e(f"  v_mov_b32 v10, v{vM}")
    e(f"  v_mov_b32 v11, v{vL}")
    e(f"  ds_write_b64 v{vT0}, v[10:11]")
    e("  s_and_saveexec_b64 s[38:39], vcc")
    e("  s_nop 4")
    for s in range(3):
        e(f"  ds_write_b128 v{vS}, v[{vD+4*s}:{vD+4*s+3}] offset:{256*s}")
    e("  s_mov_b64 exec, s[38:39]")
    e("  s_waitcnt lgkmcnt(0)")
    e("  s_barrier")
    e(f"  v_readfirstlane_b32 s38, v0")
    e("  s_nop 3")
    e("  s_cmp_ge_u32 s38, 64")
    e(f"  s_cbranch_scc1 {lab('end')}")
    X = vB
    e(f"  v_mov_b32 v{vT0}, {MLB}")
    for w in range(W):
        e(f"  ds_read_b64 v[{X+2*w}:{X+2*w+1}], v{vT0} offset:{8*w}")
    OB = X + 2 * W
    OB = (OB + 3) // 4 * 4
    e(f"  v_min_u32 v{vT1}, 47, v{vLANE}")
    e(f"  v_lshlrev_b32 v{vT1}, 4, v{vT1}      ; lane*16")
    assert OB + 8 * W <= nv or True
    nvneed = OB + 8 * W
    for w in range(W):
        for h in range(2):
            r = OB + (w * 2 + h) * 4
            e(f"  ds_read_b128 v[{r}:{r+3}], v{vT1} offset:{(w*2+h)*768}")
    e("  s_waitcnt lgkmcnt(0)")
    e(f"  v_mov_b32 v{vM}, v{X}")
    for w in range(1, W):
        e(f"  v_max_f32 v{vM}, v{vM}, v{X+2*w}")
    for w in range(W):
        e(f"  v_sub_f32 v{X+2*w}, v{X+2*w}, v{vM}")
        e(f"  v_mul_f32 v{X+2*w}, s36, v{X+2*w}")
        e(f"  v_exp_f32 v{X+2*w}, v{X+2*w}")
    e("  s_nop 0")
    e(f"  v_mul_f32 v{vL}, v{X}, v{X+1}")
    for w in range(1, W):
        e(f"  v_fmac_f32 v{vL}, v{X+2*w}, v{X+2*w+1}")
    for j in range(4):
        e(f"  v_mov_b32 v{vD+j}, 0")
    for w in range(W):
        for j in range(4):
            e(f"  v_add_f32 v{OB+w*8+j}, v{OB+w*8+j}, v{OB+w*8+4+j}")
        for j in range(4):
            e(f"  v_fmac_f32 v{vD+j}, v{X+2*w}, v{OB+w*8+j}")
    if S > 1:
        e(f"  s_lshl_b32 s38, s29, {lg + 10}      ; head*S*1024")
        e("  s_add_u32 s24, s14, s38")
        e("  s_addc_u32 s25, s15, 0")
        e(f"  s_mov_b32 s26, {S * 1024}")
        e("  s_mov_b32 s27, 0x20000")
        e(f"  v_cmp_eq_u32 vcc, 48, v{vLANE}")
        e("  s_nop 1")
        e(f"  v_cndmask_b32 v{vD+4}, v{vD}, v{vM}, vcc")
        e(f"  v_cndmask_b32 v{vD+5}, v{vD+1}, v{vL}, vcc")
        e(f"  v_mov_b32 v{vD+6}, v{vD+2}")
        e(f"  v_mov_b32 v{vD+7}, v{vD+3}")
        e(f"  v_lshlrev_b32 v{vT0}, 4, v{vLANE}")
        e(f"  s_lshl_b32 s39, s30, 10            ; split*1024")
        e(f"  v_cmp_gt_u32 vcc, 49, v{vLANE}")
        e("  s_and_saveexec_b64 s[42:43], vcc")
        e(f"  buffer_store_dwordx4 v[{vD+4}:{vD+7}], v{vT0}, s[24:27], s39 offen sc1")
        e("  s_mov_b64 exec, s[42:43]")
        e("  s_waitcnt vmcnt(0)")
        e("  s_lshr_b32 s38, s29, 1")
        e("  s_lshl_b32 s38, s38, 2")
        e("  s_and_b32 s39, s29, 1")
        e("  s_lshl_b32 s39, s39, 4          ; shift")
        e("  s_lshl_b32 s44, 1, s39")
        e("  s_mov_b32 s48, s12")
        e("  s_mov_b32 s49, s13")
        e("  s_mov_b32 s50, 256")
        e("  s_mov_b32 s51, 0x20000")
        e(f"  v_mov_b32 v{vT2}, s44")
        e(f"  v_mov_b32 v{vT3}, s38")
        e(f"  v_cmp_eq_u32 vcc, 0, v{vLANE}")
        e("  s_and_saveexec_b64 s[42:43], vcc")
        e(f"  buffer_atomic_add v{vT2}, v{vT3}, s[48:51], 0 offen sc0 sc1")
        e("  s_waitcnt vmcnt(0)")
        e("  s_mov_b64 exec, s[42:43]")
        e(f"  v_readfirstlane_b32 s44, v{vT2}")
        e("  s_nop 3")
        e("  s_lshr_b32 s44, s44, s39")
        e("  s_and_b32 s44, s44, 0xffff")
        e(f"  s_cmp_lg_u32 s44, {S-1}")
        e(f"  s_cbranch_scc1 {lab('fin')}")
        e(f"  v_mov_b32 v{vT0}, 768")
        for s in range(S):
            e(f"  buffer_load_dwordx4 v[{X+8*s}:{X+8*s+3}], v{vT1}, s[24:27], 0 offen offset:{s*1024} sc1" if s * 1024 < 4096 else None) if s * 1024 < 4096 else None
            if s * 1024 >= 4096:
                e(f"  s_mov_b32 s39, {s*1024}")
                e(f"  buffer_load_dwordx4 v[{X+8*s}:{X+8*s+3}], v{vT1}, s[24:27], s39 offen sc1")
                e(f"  buffer_load_dwordx2 v[{X+8*s+4}:{X+8*s+5}], v{vT0}, s[24:27], s39 offen sc1")
            else:
                e(f"  buffer_load_dwordx2 v[{X+8*s+4}:{X+8*s+5}], v{vT0}, s[24:27], 0 offen offset:{s*1024} sc1")
        nvneed = max(nvneed, X + 8 * S)
        e("  s_waitcnt vmcnt(0)")
        e(f"  v_mov_b32 v{vM}, v{X+4}")
        for s in range(1, S):
            e(f"  v_max_f32 v{vM}, v{vM}, v{X+8*s+4}")
        for s in range(S):
            e(f"  v_sub_f32 v{X+8*s+4}, v{X+8*s+4}, v{vM}")
            e(f"  v_mul_f32 v{X+8*s+4}, s36, v{X+8*s+4}")
            e(f"  v_exp_f32 v{X+8*s+4}, v{X+8*s+4}")
        e("  s_nop 0")
        e(f"  v_mul_f32 v{vL}, v{X+4}, v{X+5}")
        for j in range(4):
            e(f"  v_mul_f32 v{vD+j}, v{X+4}, v{X+j}")
        for s in range(1, S):
            e(f"  v_fmac_f32 v{vL}, v{X+8*s+4}, v{X+8*s+5}")
            for j in range(4):
                e(f"  v_fmac_f32 v{vD+j}, v{X+8*s+4}, v{X+8*s+j}")
    e(f"  v_rcp_f32 v{vL}, v{vL}")
    e("  s_nop 0")
    for j in range(4):
        e(f"  v_mul_f32 v{vD+j}, v{vD+j}, v{vL}")
    e(f"  v_cvt_pk_bf16_f32 v{vD+4}, v{vD}, v{vD+1}")
    e(f"  v_cvt_pk_bf16_f32 v{vD+5}, v{vD+2}, v{vD+3}")
    e("  s_add_u32 s24, s10, s31")
    e("  s_addc_u32 s25, s11, 0")
    e("  s_mov_b32 s26, 384")
    e("  s_mov_b32 s27, 0x20000")
    e(f"  v_lshlrev_b32 v{vT0}, 3, v{vLANE}")
    e(f"  buffer_store_dwordx2 v[{vD+4}:{vD+5}], v{vT0}, s[24:27], 0 offen")
    e(f"{lab('fin')}:")
    if stamp:
        e("  s_waitcnt vmcnt(0)")
        e("  s_memrealtime s[42:43]")
        e("  s_waitcnt lgkmcnt(0)")
        e(f"  v_cmp_eq_u32 vcc, 0, v0")
        e("  s_and_saveexec_b64 s[44:45], vcc")
        e("  s_lshl_b32 s16, s2, 4")
        e("  s_add_u32 s16, s16, 0x28000000")
        e("  s_add_u32 s14, s14, s16")
        e("  s_addc_u32 s15, s15, 0")
        e("  v_mov_b32 v8, s40")
        e("  v_mov_b32 v9, s41")
        e("  v_mov_b32 v10, s42")
        e("  v_mov_b32 v11, s43")
        e("  v_mov_b32 v12, 0")
        e("  global_store_dwordx4 v12, v[8:11], s[14:15]")
    e(f"{lab('end')}:")
    e("  s_endpgm")
    L = [x for x in L if x is not None]
    nv = max(nv, nvneed)
    if vg: nv = max(nv, vg)
    lds = W * 1536 + W * 8
    return head(name) + "\n".join(L) + "\n" + kd(name, nv, 56), (name, nv, 56, W * 64), (NWG, W * 64, lds)

if __name__ == "__main__":
    if sys.argv[1] == "--final":
        v = json.loads(sys.argv[3])
        t, k, (g, b, lds) = gen(NAME, **v)
        text = HDR + f"; @launch grid=({g},1,1) block=({b},1,1) lds={lds}\n" + '.amdgcn_target "amdgcn-amd-amdhsa--gfx950"\n' + t
        open(sys.argv[2], "w").write(text)
        print("vgprs", k[1])
    else:
        variants = json.loads(sys.argv[2])
        text = '.amdgcn_target "amdgcn-amd-amdhsa--gfx950"\n'
        ks = []; specs = []
        for i, v in enumerate(variants):
            nm = v.pop("name", f"k{i}") + "_kernel"
            t, k, (g, b, lds) = gen(nm, **v)
            text += t; ks.append(k); specs.append(f"{nm},{g},{b},{lds}")
        co = build(sys.argv[1], text, ks)
        print(" ".join(f"{co.split('/')[-1]}:{s}" for s in specs))
```

```python
import sys, json, math
from asmlib import *

NAME = "standalone__softmax_full_bidir__decode_kernel"
HDR = """; Kernarg layout for this problem (48 bytes, ptrs only, base s[0:1]):
"""

def gen(name=NAME, S=2, W=8, T=1, R=4, pat="group", flags="nt", vg=None, stamp=False, rep=1, prof=False, pshift=0, swapwg=0, xcdmap=False):
    NWG = 128 * S
    keys_wg = 4096 // S
    groups_wg = keys_wg // 8
    gpw = groups_wg // W
    assert gpw % T == 0 and R % 2 == 0
    ntiles = gpw // T
    TP = R // 2
    assert ntiles % TP == 0
    niter = ntiles // TP
    G = 3072
    if pat == "group":
        A, C, Bs = G, W * G, T * W * G
    elif pat == "unit":
        A, C, Bs = T * G, G, T * W * G
    elif pat == "contig":
        A, C, Bs = gpw * G, G, T * G
    chunk = keys_wg * 384
    nl = 3 * T
    cscale = (192 ** -0.5) * math.log2(math.e)
    import struct
    cbits = struct.unpack("<I", struct.pack("<f", cscale))[0]
    vOFF = 1
    vLANE = 2
    vT0, vT1, vT2, vT3 = 3, 4, 5, 6
    vM = 7
    vL = 8
    vAL = 9
    vMC = 10
    vQ = 12
    vMASK = 24
    vD = 28
    vS = 40
    vS2 = vS + T
    vS3 = vS2 + T
    vA = (vS3 + T + 3) // 4 * 4
    vB = vA + 4 * T
    nv = vB + R * nl * 4
    SK, SV = 16, 20
    L = []
    e = L.append
    lab = lambda s: f"L_{s}_{name}"
    vP = 11
    def pstamp():
        if prof:
            e("  s_memrealtime s[46:47]")
            e("  s_waitcnt lgkmcnt(0)")
            e(f"  s_add_u32 s53, s52, {(1<<pshift)-1}")
            e(f"  s_lshr_b32 m0, s53, {pshift}")
            e(f"  s_nop 1")
            e(f"  v_writelane_b32 v{vPR}, s46, m0")
            e("  s_add_u32 s52, s52, 1")
    e(f"  s_cmp_ge_u32 s2, {NWG}")
    e(f"  s_cbranch_scc1 {lab('end')}")
    if swapwg:
        e(f"  s_xor_b32 s2, s2, {swapwg}")
    if xcdmap:
        e(f"  s_and_b32 s3, s2, 7")
        e(f"  s_lshr_b32 s2, s2, 3")
        e(f"  s_mul_i32 s3, s3, {NWG // 8}")
        e(f"  s_add_u32 s2, s2, s3")
    vPR = nv
    if prof:
        nv += 1
        e("  s_mov_b32 s52, 0")
        e(f"  v_mov_b32 v{vPR}, 0")
        pstamp()
    e("  s_load_dwordx4 s[4:7], s[0:1], 0      ; q, k")
    e("  s_load_dwordx4 s[8:11], s[0:1], 16    ; v, out")
    e("  s_load_dwordx4 s[12:15], s[0:1], 32")
    if stamp:
        e("  s_memrealtime s[40:41]")
    e(f"  v_lshrrev_b32 v{vT0}, 6, v0        ; wave")
    e(f"  v_and_b32 v{vLANE}, 63, v0           ; lane")
    e(f"  v_lshrrev_b32 v{vT1}, 3, v{vLANE}")
    e(f"  v_mul_u32_u24 v{vT1}, 384, v{vT1}")
    e(f"  v_and_b32 v{vT2}, 7, v{vLANE}        ; chunk c")
    e(f"  v_lshlrev_b32 v{vT3}, 4, v{vT2}      ; c*16")
    e(f"  v_add_u32 v{vT1}, v{vT1}, v{vT3}")
    e(f"  s_mov_b32 s28, {A}")
    e(f"  v_mul_lo_u32 v{vT0}, v{vT0}, s28")
    e(f"  v_add_u32 v{vOFF}, v{vT0}, v{vT1}           ; voffset")
    lg = S.bit_length() - 1
    assert (1 << lg) == S
    e(f"  s_lshr_b32 s29, s2, {lg}        ; head")
    e(f"  s_and_b32 s30, s2, {S-1}        ; split")
    e(f"  s_mul_i32 s31, s29, 384          ; q offset")
    e(f"  s_mul_i32 s32, s2, {chunk}")
    e(f"  s_mul_hi_u32 s33, s2, {chunk}")
    e("  s_waitcnt lgkmcnt(0)")
    e("  s_add_u32 s24, s4, s31")
    e("  s_addc_u32 s25, s5, 0")
    e("  s_mov_b32 s26, 384")
    e("  s_mov_b32 s27, 0x20000")
    e(f"  s_add_u32 s{SK}, s6, s32")
    e(f"  s_addc_u32 s{SK+1}, s7, s33")
    e(f"  s_mov_b32 s{SK+2}, {chunk}")
    e(f"  s_mov_b32 s{SK+3}, 0x20000")
    for s in range(3):
        e(f"  buffer_load_dwordx4 v[{vQ+4*s}:{vQ+4*s+3}], v{vT3}, s[24:27], 0 offen offset:{128*s}")
    e(f"  s_add_u32 s{SV}, s8, s32")
    e(f"  s_addc_u32 s{SV+1}, s9, s33")
    e(f"  s_mov_b32 s{SV+2}, {chunk}")
    e(f"  s_mov_b32 s{SV+3}, 0x20000")

    def buf(slot, t, s):
        return vB + (slot * nl + t * 3 + s) * 4
    def issue(slot, tile_add):
        srd = SK if slot % 2 == 0 else SV
        for t in range(T):
            e(f"  s_add_u32 s35, s34, {tile_add * Bs + t * C}")
            for s in range(3):
                r = buf(slot, t, s)
                e(f"  buffer_load_dwordx4 v[{r}:{r+3}], v{vOFF}, s[{srd}:{srd+3}], s35 offen offset:{128*s} {flags}")
    if rep > 1:
        e(f"  s_mov_b32 s45, {rep}")
        e(f"{lab('rep')}:")
        e(f"  v_and_b32 v{vT2}, 7, v{vLANE}        ; chunk c")
    e("  s_mov_b32 s34, 0")
    for r in range(R):
        issue(r, r // 2)
    for i in range(4):
        e(f"  v_mov_b32 v{vMASK+i}, 0")
    e(f"  v_and_b32 v{vT0}, 1, v{vT2}")
    e(f"  v_lshlrev_b32 v{vT0}, 4, v{vT0}       ; 16*(c&1)")
    e(f"  v_mov_b32 v{vT1}, 0xffff")
    e(f"  v_lshlrev_b32 v{vT1}, v{vT0}, v{vT1}")
    e(f"  v_lshrrev_b32 v{vT0}, 1, v{vT2}       ; c>>1")
    for i in range(4):
        e(f"  v_cmp_eq_u32 vcc, {i}, v{vT0}")
        e(f"  s_nop 1")
        e(f"  v_cndmask_b32 v{vMASK+i}, v{vMASK+i}, v{vT1}, vcc")
    for i in range(12):
        e(f"  v_mov_b32 v{vD+i}, 0")
    e(f"  v_mov_b32 v{vM}, 0xff7fffff")
    e(f"  v_mov_b32 v{vL}, 0")
    e(f"  s_mov_b32 s36, 0x{cbits:08x}      ; scale*log2e")

    def computeK(slot):
        for t in range(T):
            for s in range(3):
                acc = [vS, vS2, vS3][s] + t
                r = buf(slot, t, s)
                for j in range(4):
                    if j == 0:
                        e(f"  v_dot2_f32_bf16 v{acc}, v{r}, v{vQ+4*s}, 0")
                    else:
                        e(f"  v_dot2_f32_bf16 v{acc}, v{r+j}, v{vQ+4*s+j}, v{acc}")
        e("  s_nop 2")
        for t in range(T):
            e(f"  v_add_f32 v{vS2+t}, v{vS2+t}, v{vS3+t}")
        for t in range(T):
            e(f"  v_add_f32 v{vS+t}, v{vS+t}, v{vS2+t}")
        for mod in ["quad_perm:[1,0,3,2]", "quad_perm:[2,3,0,1]", "row_half_mirror"]:
            e("  s_nop 1")
            for t in range(T):
                e(f"  v_add_f32_dpp v{vS+t}, v{vS+t}, v{vS+t} {mod} row_mask:0xf bank_mask:0xf")
        e(f"  v_max_f32 v{vT0}, v{vS}, v{vM}")
        for t in range(1, T):
            e(f"  v_max_f32 v{vT0}, v{vT0}, v{vS+t}")
        e("  s_nop 1")
        e(f"  v_max_f32_dpp v{vT0}, v{vT0}, v{vT0} row_ror:8 row_mask:0xf bank_mask:0xf")
        e(f"  v_mov_b32 v{vT1}, v{vT0}")
        e("  s_nop 1")
        e(f"  v_permlane16_swap_b32 v{vT0}, v{vT1}")
        e(f"  v_max_f32 v{vT0}, v{vT0}, v{vT1}")
        e(f"  v_mov_b32 v{vT1}, v{vT0}")
        e("  s_nop 1")
        e(f"  v_permlane32_swap_b32 v{vT0}, v{vT1}")
        e(f"  v_max_f32 v{vT0}, v{vT0}, v{vT1}       ; m_new")
        e(f"  v_sub_f32 v{vAL}, v{vM}, v{vT0}")
        e(f"  v_mul_f32 v{vAL}, s36, v{vAL}")
        e(f"  v_exp_f32 v{vAL}, v{vAL}")
        e(f"  v_mov_b32 v{vM}, v{vT0}")
        e(f"  v_mul_f32 v{vMC}, s36, v{vT0}")
        for t in range(T):
            e(f"  v_fma_f32 v{vS+t}, v{vS+t}, s36, -v{vMC}")
        for t in range(T):
            e(f"  v_exp_f32 v{vS+t}, v{vS+t}")
        e(f"  v_mul_f32 v{vL}, v{vL}, v{vAL}")
        for i in range(12):
            e(f"  v_mul_f32 v{vD+i}, v{vD+i}, v{vAL}")
        for t in range(T):
            e(f"  v_add_f32 v{vL}, v{vL}, v{vS+t}")
        for t in range(T):
            e(f"  v_cvt_pk_bf16_f32 v{vS2+t}, v{vS+t}, v{vS+t}")
        for t in range(T):
            for i in range(4):
                e(f"  v_and_b32 v{vA+4*t+i}, v{vS2+t}, v{vMASK+i}")
    def computeV(slot):
        e("  s_nop 1")
        for t in range(T):
            for s in range(3):
                r = buf(slot, t, s)
                e(f"  v_mfma_f32_16x16x32_bf16 v[{vD+4*s}:{vD+4*s+3}], v[{vA+4*t}:{vA+4*t+3}], v[{r}:{r+3}], v[{vD+4*s}:{vD+4*s+3}]")
    def compute(slot):
        if slot % 2 == 0: computeK(slot)
        else: computeV(slot)

    extra = 0
    if niter > 1:
        e(f"  s_mov_b32 s37, {niter - 1}")
        e(f"{lab('loop')}:")
        e(f"  s_add_u32 s34, s34, {TP * Bs}")
        for r in range(R):
            e(f"  s_waitcnt vmcnt({min(63, (R - 1) * nl)})")
            if r % 2 == 0: pstamp()
            compute(r)
            issue(r, r // 2)
        e("  s_sub_u32 s37, s37, 1")
        e("  s_cmp_lg_u32 s37, 0")
        e(f"  s_cbranch_scc1 {lab('loop')}")
    for r in range(R):
        e(f"  s_waitcnt vmcnt({min(63, (R - 1 - r) * nl)})")
        if r % 2 == 0: pstamp()
        compute(r)
    if prof:
        e(f"  s_add_u32 s52, s52, {(1<<pshift)-1}")
    pstamp()
    if prof:
        e(f"  v_lshrrev_b32 v{vT0}, 6, v0")
        e(f"  s_mul_i32 s46, s2, {W}")
        e(f"  v_add_u32 v{vT0}, s46, v{vT0}")
        e(f"  v_lshlrev_b32 v{vT0}, 8, v{vT0}")
        e(f"  v_lshl_add_u32 v{vT0}, v{vLANE}, 2, v{vT0}")
        e(f"  s_add_u32 s46, s14, 0x29000000")
        e(f"  s_addc_u32 s47, s15, 0")
        e(f"  global_store_dword v{vT0}, v{vPR}, s[46:47]")

    if rep > 1:
        e("  s_sub_u32 s45, s45, 1")
        e("  s_cmp_lg_u32 s45, 0")
        e(f"  s_cbranch_scc1 {lab('rep')}")
    e("  s_nop 1")
    e(f"  v_add_f32_dpp v{vL}, v{vL}, v{vL} row_ror:8 row_mask:0xf bank_mask:0xf")
    e(f"  v_mov_b32 v{vT1}, v{vL}")
    e("  s_nop 1")
    e(f"  v_permlane16_swap_b32 v{vL}, v{vT1}")
    e(f"  v_add_f32 v{vL}, v{vL}, v{vT1}")
    e(f"  v_mov_b32 v{vT1}, v{vL}")
    e("  s_nop 1")
    e(f"  v_permlane32_swap_b32 v{vL}, v{vT1}")
    e(f"  v_add_f32 v{vL}, v{vL}, v{vT1}")
    MLB = W * 1536
    e(f"  v_lshrrev_b32 v{vT0}, 6, v0          ; wave")
    e(f"  v_and_b32 v{vT1}, 15, v{vLANE}        ; n")
    e(f"  v_lshrrev_b32 v{vT2}, 4, v{vLANE}     ; rg")
    e(f"  v_lshrrev_b32 v{vT3}, 3, v{vT1}       ; half = n>>3")
    e(f"  v_lshrrev_b32 v{vS}, 1, v{vT2}        ; rg>>1")
    e(f"  v_cmp_eq_u32 vcc, v{vT3}, v{vS}")
    e(f"  v_lshl_add_u32 v{vS}, v{vT0}, 1, v{vT3}   ; w*2+half")
    e(f"  v_mul_u32_u24 v{vS}, 768, v{vS}")
    e(f"  v_and_b32 v{vT1}, 7, v{vT1}")
    e(f"  v_lshlrev_b32 v{vT1}, 5, v{vT1}       ; (n&7)*32 bytes")
    e(f"  v_and_b32 v{vT2}, 1, v{vT2}")
    e(f"  v_lshlrev_b32 v{vT2}, 4, v{vT2}")
    e(f"  v_add3_u32 v{vS}, v{vS}, v{vT1}, v{vT2}")
    e(f"  v_lshlrev_b32 v{vT0}, 3, v{vT0}")
    e(f"  v_add_u32 v{vT0}, {MLB}, v{vT0}")
    e(f"  v_mov_b32 v{vT2}, v{vM}")
    e(f"  v_mov_b32 v{vT3}, v{vL}")
    assert vT2 % 2 == 1 or True
    e(f"  v_mov_b32 v10, v{vM}")
    e(f"  v_mov_b32 v11, v{vL}")
    e(f"  ds_write_b64 v{vT0}, v[10:11]")
    e("  s_and_saveexec_b64 s[38:39], vcc")
    e("  s_nop 4")
    for s in range(3):
        e(f"  ds_write_b128 v{vS}, v[{vD+4*s}:{vD+4*s+3}] offset:{256*s}")
    e("  s_mov_b64 exec, s[38:39]")
    e("  s_waitcnt lgkmcnt(0)")
    e("  s_barrier")
    e(f"  v_readfirstlane_b32 s38, v0")
    e("  s_nop 3")
    e("  s_cmp_ge_u32 s38, 64")
    e(f"  s_cbranch_scc1 {lab('end')}")
    X = vB
    e(f"  v_mov_b32 v{vT0}, {MLB}")
    for w in range(W):
        e(f"  ds_read_b64 v[{X+2*w}:{X+2*w+1}], v{vT0} offset:{8*w}")
    OB = X + 2 * W
    OB = (OB + 3) // 4 * 4
    e(f"  v_min_u32 v{vT1}, 47, v{vLANE}")
    e(f"  v_lshlrev_b32 v{vT1}, 4, v{vT1}      ; lane*16")
    assert OB + 8 * W <= nv or True
    nvneed = OB + 8 * W
    for w in range(W):
        for h in range(2):
            r = OB + (w * 2 + h) * 4
            e(f"  ds_read_b128 v[{r}:{r+3}], v{vT1} offset:{(w*2+h)*768}")
    e("  s_waitcnt lgkmcnt(0)")
    e(f"  v_mov_b32 v{vM}, v{X}")
    for w in range(1, W):
        e(f"  v_max_f32 v{vM}, v{vM}, v{X+2*w}")
    for w in range(W):
        e(f"  v_sub_f32 v{X+2*w}, v{X+2*w}, v{vM}")
        e(f"  v_mul_f32 v{X+2*w}, s36, v{X+2*w}")
        e(f"  v_exp_f32 v{X+2*w}, v{X+2*w}")
    e("  s_nop 0")
    e(f"  v_mul_f32 v{vL}, v{X}, v{X+1}")
    for w in range(1, W):
        e(f"  v_fmac_f32 v{vL}, v{X+2*w}, v{X+2*w+1}")
    for j in range(4):
        e(f"  v_mov_b32 v{vD+j}, 0")
    for w in range(W):
        for j in range(4):
            e(f"  v_add_f32 v{OB+w*8+j}, v{OB+w*8+j}, v{OB+w*8+4+j}")
        for j in range(4):
            e(f"  v_fmac_f32 v{vD+j}, v{X+2*w}, v{OB+w*8+j}")
    if S > 1:
        e(f"  s_lshl_b32 s38, s29, {lg + 10}      ; head*S*1024")
        e("  s_add_u32 s24, s14, s38")
        e("  s_addc_u32 s25, s15, 0")
        e(f"  s_mov_b32 s26, {S * 1024}")
        e("  s_mov_b32 s27, 0x20000")
        e(f"  v_cmp_eq_u32 vcc, 48, v{vLANE}")
        e("  s_nop 1")
        e(f"  v_cndmask_b32 v{vD+4}, v{vD}, v{vM}, vcc")
        e(f"  v_cndmask_b32 v{vD+5}, v{vD+1}, v{vL}, vcc")
        e(f"  v_mov_b32 v{vD+6}, v{vD+2}")
        e(f"  v_mov_b32 v{vD+7}, v{vD+3}")
        e(f"  v_lshlrev_b32 v{vT0}, 4, v{vLANE}")
        e(f"  s_lshl_b32 s39, s30, 10            ; split*1024")
        e(f"  v_cmp_gt_u32 vcc, 49, v{vLANE}")
        e("  s_and_saveexec_b64 s[42:43], vcc")
        e(f"  buffer_store_dwordx4 v[{vD+4}:{vD+7}], v{vT0}, s[24:27], s39 offen sc1")
        e("  s_mov_b64 exec, s[42:43]")
        e("  s_waitcnt vmcnt(0)")
        e("  s_lshr_b32 s38, s29, 1")
        e("  s_lshl_b32 s38, s38, 2")
        e("  s_and_b32 s39, s29, 1")
        e("  s_lshl_b32 s39, s39, 4          ; shift")
        e("  s_lshl_b32 s44, 1, s39")
        e("  s_mov_b32 s48, s12")
        e("  s_mov_b32 s49, s13")
        e("  s_mov_b32 s50, 256")
        e("  s_mov_b32 s51, 0x20000")
        e(f"  v_mov_b32 v{vT2}, s44")
        e(f"  v_mov_b32 v{vT3}, s38")
        e(f"  v_cmp_eq_u32 vcc, 0, v{vLANE}")
        e("  s_and_saveexec_b64 s[42:43], vcc")
        e(f"  buffer_atomic_add v{vT2}, v{vT3}, s[48:51], 0 offen sc0 sc1")
        e("  s_waitcnt vmcnt(0)")
        e("  s_mov_b64 exec, s[42:43]")
        e(f"  v_readfirstlane_b32 s44, v{vT2}")
        e("  s_nop 3")
        e("  s_lshr_b32 s44, s44, s39")
        e("  s_and_b32 s44, s44, 0xffff")
        e(f"  s_cmp_lg_u32 s44, {S-1}")
        e(f"  s_cbranch_scc1 {lab('fin')}")
        e(f"  v_mov_b32 v{vT0}, 768")
        for s in range(S):
            e(f"  buffer_load_dwordx4 v[{X+8*s}:{X+8*s+3}], v{vT1}, s[24:27], 0 offen offset:{s*1024} sc1" if s * 1024 < 4096 else None) if s * 1024 < 4096 else None
            if s * 1024 >= 4096:
                e(f"  s_mov_b32 s39, {s*1024}")
                e(f"  buffer_load_dwordx4 v[{X+8*s}:{X+8*s+3}], v{vT1}, s[24:27], s39 offen sc1")
                e(f"  buffer_load_dwordx2 v[{X+8*s+4}:{X+8*s+5}], v{vT0}, s[24:27], s39 offen sc1")
            else:
                e(f"  buffer_load_dwordx2 v[{X+8*s+4}:{X+8*s+5}], v{vT0}, s[24:27], 0 offen offset:{s*1024} sc1")
        nvneed = max(nvneed, X + 8 * S)
        e("  s_waitcnt vmcnt(0)")
        e(f"  v_mov_b32 v{vM}, v{X+4}")
        for s in range(1, S):
            e(f"  v_max_f32 v{vM}, v{vM}, v{X+8*s+4}")
        for s in range(S):
            e(f"  v_sub_f32 v{X+8*s+4}, v{X+8*s+4}, v{vM}")
            e(f"  v_mul_f32 v{X+8*s+4}, s36, v{X+8*s+4}")
            e(f"  v_exp_f32 v{X+8*s+4}, v{X+8*s+4}")
        e("  s_nop 0")
        e(f"  v_mul_f32 v{vL}, v{X+4}, v{X+5}")
        for j in range(4):
            e(f"  v_mul_f32 v{vD+j}, v{X+4}, v{X+j}")
        for s in range(1, S):
            e(f"  v_fmac_f32 v{vL}, v{X+8*s+4}, v{X+8*s+5}")
            for j in range(4):
                e(f"  v_fmac_f32 v{vD+j}, v{X+8*s+4}, v{X+8*s+j}")
    e(f"  v_rcp_f32 v{vL}, v{vL}")
    e("  s_nop 0")
    for j in range(4):
        e(f"  v_mul_f32 v{vD+j}, v{vD+j}, v{vL}")
    e(f"  v_cvt_pk_bf16_f32 v{vD+4}, v{vD}, v{vD+1}")
    e(f"  v_cvt_pk_bf16_f32 v{vD+5}, v{vD+2}, v{vD+3}")
    e("  s_add_u32 s24, s10, s31")
    e("  s_addc_u32 s25, s11, 0")
    e("  s_mov_b32 s26, 384")
    e("  s_mov_b32 s27, 0x20000")
    e(f"  v_lshlrev_b32 v{vT0}, 3, v{vLANE}")
    e(f"  buffer_store_dwordx2 v[{vD+4}:{vD+5}], v{vT0}, s[24:27], 0 offen")
    e(f"{lab('fin')}:")
    if stamp:
        e("  s_waitcnt vmcnt(0)")
        e("  s_memrealtime s[42:43]")
        e("  s_waitcnt lgkmcnt(0)")
        e(f"  v_cmp_eq_u32 vcc, 0, v0")
        e("  s_and_saveexec_b64 s[44:45], vcc")
        e("  s_lshl_b32 s16, s2, 4")
        e("  s_add_u32 s16, s16, 0x28000000")
        e("  s_add_u32 s14, s14, s16")
        e("  s_addc_u32 s15, s15, 0")
        e("  v_mov_b32 v8, s40")
        e("  v_mov_b32 v9, s41")
        e("  v_mov_b32 v10, s42")
        e("  v_mov_b32 v11, s43")
        e("  v_mov_b32 v12, 0")
        e("  global_store_dwordx4 v12, v[8:11], s[14:15]")
    e(f"{lab('end')}:")
    e("  s_endpgm")
    L = [x for x in L if x is not None]
    nv = max(nv, nvneed)
    if vg: nv = max(nv, vg)
    lds = W * 1536 + W * 8
    return head(name) + "\n".join(L) + "\n" + kd(name, nv, 56), (name, nv, 56, W * 64), (NWG, W * 64, lds)

if __name__ == "__main__":
    if sys.argv[1] == "--final":
        v = json.loads(sys.argv[3])
        t, k, (g, b, lds) = gen(NAME, **v)
        text = HDR + f"; @launch grid=({g},1,1) block=({b},1,1) lds={lds}\n" + '.amdgcn_target "amdgcn-amd-amdhsa--gfx950"\n' + t
        open(sys.argv[2], "w").write(text)
        print("vgprs", k[1])
    else:
        variants = json.loads(sys.argv[2])
        text = '.amdgcn_target "amdgcn-amd-amdhsa--gfx950"\n'
        ks = []; specs = []
        for i, v in enumerate(variants):
            nm = v.pop("name", f"k{i}") + "_kernel"
            t, k, (g, b, lds) = gen(nm, **v)
            text += t; ks.append(k); specs.append(f"{nm},{g},{b},{lds}")
        co = build(sys.argv[1], text, ks)
        print(" ".join(f"{co.split('/')[-1]}:{s}" for s in specs))
```

```python
import sys, json, math, struct
from asmlib import *

NAME = "standalone__softmax_full_bidir__decode_kernel"
HDR = """; Kernarg layout for this problem (48 bytes, ptrs only, base s[0:1]):
"""
KBYTES = 128 * 4096 * 384
WSBYTES = 805306368

def gen(name=NAME, G=8, W=4, T=1, flags="nt", stamp=False, rot=0, rotmode="lin", helper=True, ldsmin=84000, estamp=False, xorwg=0):
    NWG = 256
    HP = G // 2
    GB = 3072
    tb = T * GB
    head_bytes = 4096 * 384
    TPH = head_bytes // tb
    nw = G * W
    nper = TPH // nw
    assert nper >= 2 and TPH % nw == 0 and (nper & (nper - 1)) == 0
    N = HP * nper
    step = nw * tb
    assert nper * step == head_bytes
    nl = 3 * T
    lgG = G.bit_length() - 1
    cscale = (192 ** -0.5) * math.log2(math.e)
    cbits = struct.unpack("<I", struct.pack("<f", cscale))[0]
    REC = 1600
    LDS_FLAG = HP * W * REC
    lds = max(LDS_FLAG + 64, ldsmin)
    WREC = 1024
    vOFF = 1; vLANE = 2
    vT0, vT1, vT2, vT3 = 3, 4, 5, 6
    vM = 7; vAL = 8; vMC = 9
    vFA = 10
    vLM = 12
    vMASK = 16
    vONE = 20
    vD = 24
    vQ = 40
    vA = 52
    vS = vA + 4 * T; vS2 = vS + T; vS3 = vS2 + T
    vK = (vS3 + T + 3) // 4 * 4
    vV = vK + 4 * nl
    vQS = vV + 4 * nl
    nv = vQS + 12 * (HP - 1)
    X = vK
    L = []
    e = L.append
    lab = lambda s: f"L_{s}_{name}"
    ecount = [0]
    def est():
        if estamp:
            i = ecount[0]; ecount[0] += 1
            e(f"  s_memrealtime s[{60+2*i}:{61+2*i}]")

    e(f"  s_cmp_ge_u32 s2, {NWG}")
    e(f"  s_cbranch_scc1 {lab('end')}")
    e("  s_load_dwordx2 s[8:9], s[0:1], 8       ; k")
    e("  s_load_dwordx2 s[16:17], s[0:1], 0     ; q")
    e("  s_load_dwordx2 s[12:13], s[0:1], 16    ; v")
    e("  s_load_dwordx2 s[20:21], s[0:1], 24    ; out")
    e("  s_load_dwordx4 s[24:27], s[0:1], 32")
    if stamp: e("  s_memrealtime s[56:57]")
    if estamp:
        for i in range(1, 14): e(f"  s_mov_b32 s{60+2*i}, 0")
    est()
    if xorwg: e(f"  s_xor_b32 s2, s2, {xorwg}")
    e(f"  v_lshrrev_b32 v{vT0}, 6, v0          ; wave")
    e(f"  v_and_b32 v{vLANE}, 63, v0")
    e(f"  v_readfirstlane_b32 s32, v{vT0}")
    e(f"  v_lshrrev_b32 v{vT1}, 3, v{vLANE}")
    e(f"  v_mul_u32_u24 v{vT1}, 384, v{vT1}")
    e(f"  v_and_b32 v{vT2}, 7, v{vLANE}        ; chunk c")
    e(f"  v_lshlrev_b32 v{vT3}, 4, v{vT2}      ; c*16")
    e(f"  v_add_u32 v{vOFF}, v{vT1}, v{vT3}")
    e(f"  s_lshr_b32 s33, s2, {lgG}            ; group")
    e(f"  s_and_b32 s34, s2, {G-1}             ; member")
    e(f"  s_mov_b32 s10, {KBYTES}")
    e(f"  s_mov_b32 s11, 0x20000")
    e(f"  s_mov_b32 s14, {KBYTES}")
    e(f"  s_mov_b32 s15, 0x20000")
    e(f"  s_mov_b32 s18, 49152")
    e(f"  s_mov_b32 s19, 0x20000")
    e(f"  s_mul_i32 s35, s34, {W}")
    e(f"  s_add_u32 s35, s35, s32")
    e(f"  s_mul_i32 s36, s33, {HP * head_bytes}")
    e(f"  s_mul_i32 s44, s35, {tb}")
    e(f"  s_add_u32 s36, s36, s44")
    if rot:
        if rotmode == "lin":
            e(f"  s_mul_i32 s37, s33, {rot}")
        else:
            e(f"  s_mul_i32 s37, s33, 0x9E3779B1")
            e(f"  s_lshr_b32 s37, s37, 16")
        e(f"  s_and_b32 s37, s37, {nper-1}")
        e(f"  s_mul_i32 s37, s37, {step}")
    else:
        e(f"  s_mov_b32 s37, 0")
    e(f"  s_mov_b32 s38, 0")
    e(f"  s_add_u32 s39, s36, s37")
    e(f"  s_mul_i32 s45, s33, {HP * 384}")
    if helper:
        e(f"  s_cmp_eq_u32 s32, {W}")
        e(f"  s_cbranch_scc1 {lab('helper')}")
    e("  s_waitcnt lgkmcnt(0)")
    est()
    def issue(base, srd):
        for t in range(T):
            if t == 0:
                so = "s39"
            else:
                e(f"  s_add_u32 s44, s39, {t * GB}")
                so = "s44"
            for s in range(3):
                r = base + (t * 3 + s) * 4
                e(f"  buffer_load_dwordx4 v[{r}:{r+3}], v{vOFF}, s[8:11], {so} offen offset:{128*s} {flags}" if srd == 8 else
                  f"  buffer_load_dwordx4 v[{r}:{r+3}], v{vOFF}, s[12:15], {so} offen offset:{128*s} {flags}")
    issue(vK, 8)
    for s in range(3):
        e(f"  buffer_load_dwordx4 v[{vQ+4*s}:{vQ+4*s+3}], v{vT3}, s[16:19], s45 offen offset:{128*s}")
    issue(vV, 12)
    for h in range(1, HP):
        for s in range(3):
            off = h * 384 + 128 * s
            e(f"  buffer_load_dwordx4 v[{vQS+12*(h-1)+4*s}:{vQS+12*(h-1)+4*s+3}], v{vT3}, s[16:19], s45 offen offset:{off}")
    assert (HP - 1) * 384 + 256 < 4096
    e("  s_mov_b32 s28, s26")
    e("  s_mov_b32 s29, s27")
    e(f"  s_mov_b32 s30, {WSBYTES}")
    e("  s_mov_b32 s31, 0x20000")
    e("  s_mov_b32 s26, 256")
    e("  s_mov_b32 s27, 0x20000")
    e("  s_mov_b32 s22, 49152")
    e("  s_mov_b32 s23, 0x20000")
    for i in range(4): e(f"  v_mov_b32 v{vMASK+i}, 0")
    e(f"  v_and_b32 v{vT0}, 1, v{vT2}")
    e(f"  v_lshlrev_b32 v{vT0}, 4, v{vT0}")
    e(f"  v_mov_b32 v{vT1}, 0xffff")
    e(f"  v_lshlrev_b32 v{vT1}, v{vT0}, v{vT1}")
    e(f"  v_lshrrev_b32 v{vT0}, 1, v{vT2}       ; c>>1")
    for i in range(4):
        e(f"  v_cmp_eq_u32 vcc, {i}, v{vT0}")
        e(f"  v_mov_b32 v{vONE+i}, 0x3f803f80")
        e(f"  s_nop 0")
        e(f"  v_cndmask_b32 v{vMASK+i}, v{vMASK+i}, v{vT1}, vcc")
    for i in range(16): e(f"  v_mov_b32 v{vD+i}, 0")
    e(f"  v_mov_b32 v{vM}, 0xff7fffff")
    e(f"  s_mov_b32 s40, 0x{cbits:08x}      ; scale*log2e")
    e(f"  s_mov_b32 s41, {N}")
    e(f"  s_mov_b32 s42, {nper}")
    e(f"  s_mul_i32 s43, s32, {REC}")
    e(f"  v_and_b32 v{vT1}, 15, v{vLANE}        ; n")
    e(f"  v_lshrrev_b32 v{vT2}, 4, v{vLANE}     ; rg")
    e(f"  v_lshrrev_b32 v{vT3}, 3, v{vT1}       ; half")
    e(f"  v_lshrrev_b32 v{vT0}, 1, v{vT2}")
    e(f"  v_cmp_eq_u32 s[46:47], v{vT3}, v{vT0}")
    e(f"  v_mul_u32_u24 v{vFA}, 800, v{vT3}")
    e(f"  v_mul_u32_u24 v{vFA+1}, 800, v{vT3}")
    e(f"  v_and_b32 v{vT1}, 7, v{vT1}")
    e(f"  v_lshlrev_b32 v{vT1}, 5, v{vT1}")
    e(f"  v_and_b32 v{vT2}, 1, v{vT2}")
    e(f"  v_lshlrev_b32 v{vT2}, 4, v{vT2}")
    e(f"  v_add3_u32 v{vFA}, v{vFA}, v{vT1}, v{vT2}")
    est()
    e(f"{lab('loop')}:")
    e(f"  s_waitcnt vmcnt({nl})")
    if estamp:
        e(f"  s_cmp_lg_u32 s41, {N}")
        e(f"  s_cbranch_scc1 {lab('nost')}")
        est()
        e(f"{lab('nost')}:")
    for t in range(T):
        for s in range(3):
            acc = [vS, vS2, vS3][s] + t
            r = vK + (t * 3 + s) * 4
            for j in range(4):
                if j == 0: e(f"  v_dot2_f32_bf16 v{acc}, v{r}, v{vQ+4*s}, 0")
                else: e(f"  v_dot2_f32_bf16 v{acc}, v{r+j}, v{vQ+4*s+j}, v{acc}")
    e("  s_cmp_eq_u32 s41, 1")
    e(f"  s_cbranch_scc1 {lab('skipk')}")
    e(f"  s_add_u32 s37, s37, {step}")
    if rot:
        e(f"  s_cmp_ge_u32 s37, {head_bytes}")
        e(f"  s_cselect_b32 s44, {head_bytes}, 0")
        e(f"  s_sub_u32 s37, s37, s44")
        e(f"  s_add_u32 s38, s38, 1")
        e(f"  s_cmp_eq_u32 s38, {nper}")
        e(f"  s_cselect_b32 s44, {head_bytes}, 0")
        e(f"  s_add_u32 s36, s36, s44")
        e(f"  s_and_b32 s38, s38, {nper-1}")
    e(f"  s_add_u32 s39, s36, s37")
    issue(vK, 8)
    e(f"{lab('skipk')}:")
    e("  s_nop 2")
    for t in range(T): e(f"  v_add_f32 v{vS2+t}, v{vS2+t}, v{vS3+t}")
    for t in range(T): e(f"  v_add_f32 v{vS+t}, v{vS+t}, v{vS2+t}")
    for mod in ["quad_perm:[1,0,3,2]", "quad_perm:[2,3,0,1]", "row_half_mirror"]:
        e("  s_nop 1")
        for t in range(T):
            e(f"  v_add_f32_dpp v{vS+t}, v{vS+t}, v{vS+t} {mod} row_mask:0xf bank_mask:0xf")
    e(f"  v_max_f32 v{vT0}, v{vS}, v{vM}")
    for t in range(1, T): e(f"  v_max_f32 v{vT0}, v{vT0}, v{vS+t}")
    e("  s_nop 1")
    e(f"  v_max_f32_dpp v{vT0}, v{vT0}, v{vT0} row_ror:8 row_mask:0xf bank_mask:0xf")
    e(f"  v_mov_b32 v{vT1}, v{vT0}")
    e("  s_nop 1")
    e(f"  v_permlane16_swap_b32 v{vT0}, v{vT1}")
    e(f"  v_max_f32 v{vT0}, v{vT0}, v{vT1}")
    e(f"  v_mov_b32 v{vT1}, v{vT0}")
    e("  s_nop 1")
    e(f"  v_permlane32_swap_b32 v{vT0}, v{vT1}")
    e(f"  v_max_f32 v{vT0}, v{vT0}, v{vT1}       ; m_new")
    e(f"  v_sub_f32 v{vAL}, v{vM}, v{vT0}")
    e(f"  v_mul_f32 v{vMC}, s40, v{vT0}")
    e(f"  v_mul_f32 v{vAL}, s40, v{vAL}")
    e(f"  v_mov_b32 v{vM}, v{vT0}")
    e(f"  v_exp_f32 v{vAL}, v{vAL}")
    for t in range(T): e(f"  v_fma_f32 v{vS+t}, v{vS+t}, s40, -v{vMC}")
    for t in range(T): e(f"  v_exp_f32 v{vS+t}, v{vS+t}")
    for i in range(16): e(f"  v_mul_f32 v{vD+i}, v{vD+i}, v{vAL}")
    for t in range(T): e(f"  v_cvt_pk_bf16_f32 v{vS2+t}, v{vS+t}, v{vS+t}")
    for t in range(T):
        for i in range(4): e(f"  v_and_b32 v{vA+4*t+i}, v{vS2+t}, v{vMASK+i}")
    e("  s_cmp_eq_u32 s41, 1")
    e(f"  s_cbranch_scc0 {lab('notlast')}")
    e("  s_waitcnt vmcnt(0)")
    e(f"{lab('notlast')}:")
    e(f"  s_waitcnt vmcnt({nl})")
    for t in range(T):
        for s in range(3):
            r = vV + (t * 3 + s) * 4
            e(f"  v_mfma_f32_16x16x32_bf16 v[{vD+4*s}:{vD+4*s+3}], v[{vA+4*t}:{vA+4*t+3}], v[{r}:{r+3}], v[{vD+4*s}:{vD+4*s+3}]")
        e(f"  v_mfma_f32_16x16x32_bf16 v[{vD+12}:{vD+15}], v[{vA+4*t}:{vA+4*t+3}], v[{vONE}:{vONE+3}], v[{vD+12}:{vD+15}]")
    e(f"  s_cbranch_scc1 {lab('flush')}")
    issue(vV, 12)
    e("  s_sub_u32 s41, s41, 1")
    e("  s_sub_u32 s42, s42, 1")
    e("  s_cmp_lg_u32 s42, 0")
    e(f"  s_cbranch_scc1 {lab('loop')}")
    e(f"{lab('flush')}:")
    est() if False else None
    e(f"  v_add_u32 v{vT0}, s43, v{vFA}")
    e(f"  v_add_u32 v{vT1}, s43, v{vFA+1}")
    e("  s_nop 7")
    e(f"  v_mov_b32 v{vLM}, v{vD+12}")
    e(f"  v_mov_b32 v{vLM+1}, v{vM}")
    e("  s_mov_b64 exec, s[46:47]")
    for s in range(3):
        e(f"  ds_write_b128 v{vT0}, v[{vD+4*s}:{vD+4*s+3}] offset:{256*s}")
    e(f"  ds_write_b64 v{vT1}, v[{vLM}:{vLM+1}] offset:768")
    e("  s_mov_b64 exec, -1")
    e(f"  s_cmp_eq_u32 s41, {1 if True else 0}")
    e(f"  s_cbranch_scc1 {lab('final')}")
    if HP > 1:
        e(f"  s_add_u32 s43, s43, {W * REC}")
        e(f"  s_mov_b32 s42, {nper}")
        e("  s_waitcnt lgkmcnt(0)")
        for i in range(16): e(f"  v_mov_b32 v{vD+i}, 0")
        e(f"  v_mov_b32 v{vM}, 0xff7fffff")
        for i in range(12): e(f"  v_mov_b32 v{vQ+i}, v{vQS+i}")
        for i in range(12 * (HP - 2)): e(f"  v_mov_b32 v{vQS+i}, v{vQS+12+i}")
        e(f"  s_branch {lab('loop')}")
    e(f"{lab('final')}:")
    est()
    e("  s_waitcnt lgkmcnt(0)")
    e("  s_barrier")
    est()
    NH = (HP + W - 1) // W
    if HP < W:
        e(f"  s_cmp_ge_u32 s32, {HP}")
        e(f"  s_cbranch_scc1 {lab('wait2')}")
    e(f"  v_min_u32 v{vT1}, 47, v{vLANE}")
    e(f"  v_lshlrev_b32 v{vT1}, 4, v{vT1}      ; chunk*16")
    R0 = X
    O0 = (X + 4 * W + 3) // 4 * 4
    need = O0 + 8 * W
    RES = (need + 3) // 4 * 4
    need = RES + 8 * NH
    for k in range(NH):
        e(f"  s_add_u32 s44, s32, {k * W}")
        e(f"  s_mul_i32 s44, s44, {W * REC}")
        e(f"  v_mov_b32 v{vT0}, s44")
        e(f"  v_add_u32 v{vT2}, s44, v{vT1}")
        for w in range(W):
            for h in range(2):
                e(f"  ds_read_b64 v[{R0+4*w+2*h}:{R0+4*w+2*h+1}], v{vT0} offset:{w*REC + h*800 + 768}")
        for w in range(W):
            for h in range(2):
                r = O0 + (w * 2 + h) * 4
                e(f"  ds_read_b128 v[{r}:{r+3}], v{vT2} offset:{w*REC + h*800}")
        e(f"  s_waitcnt lgkmcnt({0 if estamp else 2*W})")
        rM = RES + 8 * k + 4; rL = rM + 1; rO = RES + 8 * k
        e(f"  v_mov_b32 v{rM}, v{R0+1}")
        for w in range(1, W): e(f"  v_max_f32 v{rM}, v{rM}, v{R0+4*w+1}")
        for w in range(W):
            e(f"  v_sub_f32 v{R0+4*w+1}, v{R0+4*w+1}, v{rM}")
            e(f"  v_add_f32 v{R0+4*w}, v{R0+4*w}, v{R0+4*w+2}      ; l halves")
        for w in range(W): e(f"  v_mul_f32 v{R0+4*w+1}, s40, v{R0+4*w+1}")
        for w in range(W): e(f"  v_exp_f32 v{R0+4*w+1}, v{R0+4*w+1}")
        e("  s_waitcnt lgkmcnt(0)")
        for w in range(W):
            for j in range(4): e(f"  v_add_f32 v{O0+w*8+j}, v{O0+w*8+j}, v{O0+w*8+4+j}")
        e(f"  v_mul_f32 v{rL}, v{R0+1}, v{R0}")
        for j in range(4): e(f"  v_mul_f32 v{rO+j}, v{R0+1}, v{O0+j}")
        for w in range(1, W):
            e(f"  v_fmac_f32 v{rL}, v{R0+4*w+1}, v{R0+4*w}")
            for j in range(4): e(f"  v_fmac_f32 v{rO+j}, v{R0+4*w+1}, v{O0+w*8+j}")
    est()
    e(f"  v_lshlrev_b32 v{vT0}, 4, v{vLANE}")
    e(f"  v_cmp_eq_u32 vcc, 48, v{vLANE}")
    e(f"  v_cmp_gt_u32 s[48:49], 49, v{vLANE}")
    for k in range(NH):
        rM = RES + 8 * k + 4; rL = rM + 1; rO = RES + 8 * k
        e(f"  s_mul_i32 s44, s33, {HP}")
        e(f"  s_add_u32 s44, s44, s32")
        if k: e(f"  s_add_u32 s44, s44, {k * W}")
        e(f"  s_lshl_b32 s44, s44, {lgG}")
        e(f"  s_add_u32 s44, s44, s34")
        e(f"  s_lshl_b32 s44, s44, 10")
        e(f"  v_cndmask_b32 v{O0}, v{rO}, v{rM}, vcc")
        e(f"  v_cndmask_b32 v{O0+1}, v{rO+1}, v{rL}, vcc")
        e(f"  v_mov_b32 v{O0+2}, v{rO+2}")
        e(f"  v_mov_b32 v{O0+3}, v{rO+3}")
        e("  s_mov_b64 exec, s[48:49]")
        e(f"  buffer_store_dwordx4 v[{O0}:{O0+3}], v{vT0}, s[28:31], s44 offen sc1")
        e("  s_mov_b64 exec, -1")
        if k + 1 < NH: e("  s_nop 1")
    e("  s_waitcnt vmcnt(0)")
    est()
    e(f"{lab('wait2')}:")
    e("  s_barrier")
    e("  s_cmp_lg_u32 s32, 0")
    e(f"  s_cbranch_scc1 {lab('wait3')}")
    e(f"  s_lshl_b32 s44, s33, {0 if NWG // G >= 64 else 1}")
    e(f"  s_lshl_b32 s44, s44, {2 if NWG // G <= 64 else 1}")
    assert NWG // G <= 128
    if NWG // G <= 64:
        e(f"  v_mov_b32 v{vT2}, 1")
        e(f"  v_mov_b32 v{vT3}, s44")
    else:
        e(f"  s_lshr_b32 s44, s33, 1")
        e(f"  s_lshl_b32 s44, s44, 2")
        e(f"  s_and_b32 s50, s33, 1")
        e(f"  s_lshl_b32 s50, s50, 4")
        e(f"  s_lshl_b32 s51, 1, s50")
        e(f"  v_mov_b32 v{vT2}, s51")
        e(f"  v_mov_b32 v{vT3}, s44")
    e("  s_mov_b64 exec, 1")
    e(f"  buffer_atomic_add v{vT2}, v{vT3}, s[24:27], 0 offen sc0 sc1")
    e("  s_waitcnt vmcnt(0)")
    if NWG // G > 64:
        e(f"  v_lshrrev_b32 v{vT2}, s50, v{vT2}")
        e(f"  v_and_b32 v{vT2}, 0xffff, v{vT2}")
    e(f"  v_mov_b32 v{vT3}, {LDS_FLAG}")
    e(f"  ds_write_b32 v{vT3}, v{vT2}")
    e("  s_waitcnt lgkmcnt(0)")
    e("  s_mov_b64 exec, -1")
    est()
    e(f"{lab('wait3')}:")
    e("  s_barrier")
    e(f"  v_mov_b32 v{vT3}, {LDS_FLAG}")
    e(f"  ds_read_b32 v{vT2}, v{vT3}")
    e("  s_waitcnt lgkmcnt(0)")
    e(f"  v_readfirstlane_b32 s44, v{vT2}")
    e("  s_nop 3")
    e(f"  s_cmp_lg_u32 s44, {G-1}")
    e(f"  s_cbranch_scc1 {lab('fin')}")
    if HP < W:
        e(f"  s_cmp_ge_u32 s32, {HP}")
        e(f"  s_cbranch_scc1 {lab('fin')}")
    e(f"  v_min_u32 v{vT1}, 47, v{vLANE}")
    e(f"  v_lshlrev_b32 v{vT1}, 4, v{vT1}")
    e(f"  v_mov_b32 v{vT0}, 768")
    need = max(need, X + 8 * G)
    for k in range(NH):
        e(f"  s_mul_i32 s44, s33, {HP}")
        e(f"  s_add_u32 s44, s44, s32")
        if k: e(f"  s_add_u32 s44, s44, {k * W}")
        e(f"  s_mul_i32 s50, s44, 384")
        e(f"  s_lshl_b32 s44, s44, {lgG + 10}")
        for m in range(G):
            if (m * WREC) % 4096 == 0 and m: e(f"  s_add_u32 s44, s44, 4096")
            o = (m * WREC) % 4096
            e(f"  buffer_load_dwordx4 v[{X+8*m}:{X+8*m+3}], v{vT1}, s[28:31], s44 offen offset:{o} sc1")
            e(f"  buffer_load_dwordx2 v[{X+8*m+4}:{X+8*m+5}], v{vT0}, s[28:31], s44 offen offset:{o} sc1")
        e("  s_waitcnt vmcnt(0)")
        if k == 0: est()
        e(f"  v_mov_b32 v{vM}, v{X+4}")
        for m in range(1, G): e(f"  v_max_f32 v{vM}, v{vM}, v{X+8*m+4}")
        for m in range(G): e(f"  v_sub_f32 v{X+8*m+4}, v{X+8*m+4}, v{vM}")
        for m in range(G): e(f"  v_mul_f32 v{X+8*m+4}, s40, v{X+8*m+4}")
        for m in range(G): e(f"  v_exp_f32 v{X+8*m+4}, v{X+8*m+4}")
        e("  s_nop 0")
        e(f"  v_mul_f32 v{vAL}, v{X+4}, v{X+5}")
        for j in range(4): e(f"  v_mul_f32 v{vD+j}, v{X+4}, v{X+j}")
        for m in range(1, G):
            e(f"  v_fmac_f32 v{vAL}, v{X+8*m+4}, v{X+8*m+5}")
            for j in range(4): e(f"  v_fmac_f32 v{vD+j}, v{X+8*m+4}, v{X+8*m+j}")
        e(f"  v_rcp_f32 v{vAL}, v{vAL}")
        e("  s_nop 0")
        for j in range(4): e(f"  v_mul_f32 v{vD+j}, v{vD+j}, v{vAL}")
        e(f"  v_cvt_pk_bf16_f32 v{vD+4}, v{vD}, v{vD+1}")
        e(f"  v_cvt_pk_bf16_f32 v{vD+5}, v{vD+2}, v{vD+3}")
        e(f"  v_lshlrev_b32 v{vT2}, 3, v{vLANE}")
        e(f"  v_cmp_gt_u32 vcc, 48, v{vLANE}")
        e("  s_and_saveexec_b64 s[48:49], vcc")
        e(f"  buffer_store_dwordx2 v[{vD+4}:{vD+5}], v{vT2}, s[20:23], s50 offen")
        e("  s_mov_b64 exec, s[48:49]")
    e(f"{lab('fin')}:")
    if stamp or estamp:
        e("  s_cmp_lg_u32 s32, 0")
        e(f"  s_cbranch_scc1 {lab('end')}")
    if estamp:
        e("  s_waitcnt vmcnt(0)")
        e("  s_memrealtime s[90:91]")
        e("  s_waitcnt lgkmcnt(0)")
        e(f"  v_mov_b32 v20, 0")
        for i in range(12): e(f"  v_writelane_b32 v20, s{60+2*i}, {i}")
        e(f"  v_writelane_b32 v20, s90, 15")
        e(f"  s_lshl_b32 s46, s2, 6")
        e(f"  s_add_u32 s46, s46, 0x2A000000")
        e(f"  v_lshlrev_b32 v21, 2, v{vLANE}")
        e(f"  v_cmp_gt_u32 vcc, 16, v{vLANE}")
        e(f"  s_and_saveexec_b64 s[48:49], vcc")
        e(f"  buffer_store_dword v20, v21, s[28:31], s46 offen")
        e(f"  s_mov_b64 exec, s[48:49]")
    if stamp:
        e("  s_waitcnt vmcnt(0)")
        e("  s_memrealtime s[58:59]")
        e("  s_waitcnt lgkmcnt(0)")
        e("  s_lshl_b32 s44, s2, 4")
        e("  s_add_u32 s44, s44, 0x28000000")
        e("  v_mov_b32 v8, s56")
        e("  v_mov_b32 v9, s57")
        e("  v_mov_b32 v10, s58")
        e("  v_mov_b32 v11, s59")
        e("  v_mov_b32 v12, 0")
        e("  s_mov_b64 exec, 1")
        e("  buffer_store_dwordx4 v[8:11], v12, s[28:31], s44 offen")
    e(f"  s_branch {lab('end')}")
    if helper:
        e(f"{lab('helper')}:")
        e("  s_waitcnt lgkmcnt(0)")
        e("  s_mov_b32 s28, s26")
        e("  s_mov_b32 s29, s27")
        e(f"  s_mov_b32 s30, {WSBYTES}")
        e("  s_mov_b32 s31, 0x20000")
        e("  s_mov_b32 s26, 256")
        e("  s_mov_b32 s27, 0x20000")
        e("  s_mov_b32 s22, 49152")
        e("  s_mov_b32 s23, 0x20000")
        e(f"  s_mul_i32 s44, s33, {HP * G * WREC}")
        e(f"  v_mov_b32 v{vT0}, 0")
        e("  s_mov_b64 exec, 1")
        e(f"  buffer_load_dword v{vT1}, v{vT0}, s[28:31], s44 offen sc1")
        e(f"  buffer_load_dword v{vT2}, v{vT0}, s[24:27], 0 offen sc1")
        e(f"  buffer_load_dword v{vT3}, v{vT0}, s[20:23], s45 offen sc1")
        e("  s_waitcnt vmcnt(0)")
    e(f"{lab('end')}:")
    e("  s_endpgm")
    L = [x for x in L if x is not None]
    nv = max(nv, need)
    nwaves = W + (1 if helper else 0)
    return head(name) + "\n".join(L) + "\n" + kd(name, nv, 96), (name, nv, 96, nwaves * 64), (NWG, nwaves * 64, lds)

if __name__ == "__main__":
    if sys.argv[1] == "--final":
        v = json.loads(sys.argv[3])
        t, k, (g, b, lds) = gen(NAME, **v)
        text = HDR + f"; @launch grid=({g},1,1) block=({b},1,1) lds={lds}\n" + '.amdgcn_target "amdgcn-amd-amdhsa--gfx950"\n' + t
        open(sys.argv[2], "w").write(text)
        print("vgprs", k[1])
    else:
        variants = json.loads(sys.argv[2])
        text = '.amdgcn_target "amdgcn-amd-amdhsa--gfx950"\n'
        ks = []; specs = []
        for i, v in enumerate(variants):
            nm = v.pop("name", f"k{i}") + "_kernel"
            t, k, (g, b, lds) = gen(nm, **v)
            text += t; ks.append(k); specs.append(f"{nm},{g},{b},{lds}")
        co = build(sys.argv[1], text, ks)
        print(" ".join(f"{co.split('/')[-1]}:{s}" for s in specs))
```

```python
import sys, json, math, struct
from asmlib import *

NAME = "standalone__softmax_full_bidir__decode_kernel"
HDR = """; Kernarg layout for this problem (48 bytes, ptrs only, base s[0:1]):
"""
KBYTES = 128 * 4096 * 384
WSBYTES = 805306368

def gen(name=NAME, W=4, D=4, flags="nt", stamp=False, rot="hash", ldsmin=84000, estamp=False, pair=1, spec_at=1, rotmul=0x9E3779B1, rotshift=16):
    NWG = 256
    G = 2
    GB = 3072
    head_bytes = 4096 * 384
    nw = G * W
    N = 512 // nw
    step = nw * GB
    assert (N & (N - 1)) == 0 and D + 2 <= N and D >= 1
    cscale = (192 ** -0.5) * math.log2(math.e)
    cbits = struct.unpack("<I", struct.pack("<f", cscale))[0]
    REC = 1600
    lds = max(W * REC + 64, ldsmin)
    vOFF = 1; vLANE = 2
    vT0, vT1, vT2, vT3 = 3, 4, 5, 6
    vM = 7; vAL = 8; vMC = 9
    vFA = 10
    vLM = 12
    vAT = 14
    vMASK = 16
    vONE = 20
    vD = 24
    vQ = 40
    vA = 52
    vS, vS2, vS3 = 56, 57, 58
    vST = 60
    vK = 64; vV = 76
    vB = 88
    nv = vB + 24 * D
    X = vK
    L = []
    e = L.append
    lab = lambda s: f"L_{s}_{name}"
    ecount = [0]
    def est():
        if estamp:
            i = ecount[0]; ecount[0] += 1
            e(f"  s_memrealtime s[{60+2*i}:{61+2*i}]")

    e(f"  s_cmp_ge_u32 s2, {NWG}")
    e(f"  s_cbranch_scc1 {lab('end')}")
    e("  s_load_dwordx2 s[8:9], s[0:1], 8       ; k")
    e("  s_load_dwordx2 s[16:17], s[0:1], 0     ; q")
    e("  s_load_dwordx2 s[12:13], s[0:1], 16    ; v")
    e("  s_load_dwordx2 s[20:21], s[0:1], 24    ; out")
    e("  s_load_dwordx2 s[24:25], s[0:1], 32    ; dbg")
    e("  s_load_dwordx2 s[28:29], s[0:1], 40    ; ws")
    if stamp: e("  s_memrealtime s[56:57]")
    if estamp:
        for i in range(1, 14): e(f"  s_mov_b32 s{60+2*i}, 0")
    est()
    e(f"  v_lshrrev_b32 v{vT0}, 6, v0          ; wave")
    e(f"  v_and_b32 v{vLANE}, 63, v0")
    e(f"  v_readfirstlane_b32 s32, v{vT0}")
    e(f"  v_lshrrev_b32 v{vT1}, 3, v{vLANE}")
    e(f"  v_mul_u32_u24 v{vT1}, 384, v{vT1}")
    e(f"  v_and_b32 v{vT2}, 7, v{vLANE}        ; chunk c")
    e(f"  v_lshlrev_b32 v{vT3}, 4, v{vT2}      ; c*16")
    e(f"  v_add_u32 v{vOFF}, v{vT1}, v{vT3}")
    if pair == 1:
        e(f"  s_lshr_b32 s33, s2, 1")
        e(f"  s_and_b32 s34, s2, 1")
    else:
        lp = pair.bit_length() - 1
        e(f"  s_lshr_b32 s33, s2, {lp+1}")
        e(f"  s_lshl_b32 s33, s33, {lp}")
        e(f"  s_and_b32 s44, s2, {pair-1}")
        e(f"  s_or_b32 s33, s33, s44")
        e(f"  s_bfe_u32 s34, s2, {lp | (1 << 16)}")
    e(f"  s_mov_b32 s10, {KBYTES}")
    e(f"  s_mov_b32 s11, 0x20000")
    e(f"  s_mov_b32 s14, {KBYTES}")
    e(f"  s_mov_b32 s15, 0x20000")
    e(f"  s_mov_b32 s18, 49152")
    e(f"  s_mov_b32 s19, 0x20000")
    e(f"  s_mov_b32 s22, 49152")
    e(f"  s_mov_b32 s23, 0x20000")
    e(f"  s_mov_b32 s26, 256")
    e(f"  s_mov_b32 s27, 0x20000")
    e(f"  s_mov_b32 s30, {WSBYTES}")
    e(f"  s_mov_b32 s31, 0x20000")
    e(f"  s_mul_i32 s35, s34, {W}")
    e(f"  s_add_u32 s35, s35, s32")
    e(f"  s_mul_i32 s36, s33, {head_bytes}")
    e(f"  s_mul_i32 s44, s35, {GB}")
    e(f"  s_add_u32 s36, s36, s44")
    if rot == "hash":
        e(f"  s_mul_i32 s37, s33, 0x{rotmul & 0xffffffff:x}")
        e(f"  s_lshr_b32 s37, s37, {rotshift}")
        e(f"  s_and_b32 s37, s37, {N-1}")
        e(f"  s_mul_i32 s37, s37, {step}")
    elif rot:
        e(f"  s_mul_i32 s37, s33, {rot}")
        e(f"  s_and_b32 s37, s37, {N-1}")
        e(f"  s_mul_i32 s37, s37, {step}")
    else:
        e(f"  s_mov_b32 s37, 0")
    e(f"  s_add_u32 s39, s36, s37")
    e(f"  s_mul_i32 s45, s33, 384")
    e(f"  s_lshl_b32 s50, s2, 10")
    if pair == 1:
        e(f"  s_xor_b32 s51, s50, 1024")
    else:
        e(f"  s_xor_b32 s51, s50, {pair*1024}")
    e(f"  v_lshlrev_b32 v{vFA}, 4, v{vLANE}      ; lane*16")
    e("  s_waitcnt lgkmcnt(0)")
    est()
    def issue(base, srd):
        for s in range(3):
            r = base + s * 4
            e(f"  buffer_load_dwordx4 v[{r}:{r+3}], v{vOFF}, s[{srd}:{srd+3}], s39 offen offset:{128*s} {flags}")
    issue(vK, 8)
    for s in range(3):
        e(f"  buffer_load_dwordx4 v[{vQ+4*s}:{vQ+4*s+3}], v{vT3}, s[16:19], s45 offen offset:{128*s}")
    issue(vV, 12)
    e("  s_cmp_lg_u32 s32, 0")
    e(f"  s_cbranch_scc1 {lab('nostale')}")
    e(f"  buffer_load_dwordx4 v[{vST}:{vST+3}], v{vFA}, s[28:31], s50 offen sc1")
    e(f"{lab('nostale')}:")
    for i in range(4): e(f"  v_mov_b32 v{vMASK+i}, 0")
    e(f"  v_and_b32 v{vT0}, 1, v{vT2}")
    e(f"  v_lshlrev_b32 v{vT0}, 4, v{vT0}")
    e(f"  v_mov_b32 v{vT1}, 0xffff")
    e(f"  v_lshlrev_b32 v{vT1}, v{vT0}, v{vT1}")
    e(f"  v_lshrrev_b32 v{vT0}, 1, v{vT2}       ; c>>1")
    for i in range(4):
        e(f"  v_cmp_eq_u32 vcc, {i}, v{vT0}")
        e(f"  v_mov_b32 v{vONE+i}, 0x3f803f80")
        e(f"  s_nop 0")
        e(f"  v_cndmask_b32 v{vMASK+i}, v{vMASK+i}, v{vT1}, vcc")
    for i in range(16): e(f"  v_mov_b32 v{vD+i}, 0")
    e(f"  v_mov_b32 v{vM}, 0xff7fffff")
    e(f"  s_mov_b32 s40, 0x{cbits:08x}      ; scale*log2e")
    e(f"  s_mov_b32 s41, {N}")
    e(f"  s_mul_i32 s43, s32, {REC}")
    e(f"  v_and_b32 v{vT1}, 15, v{vLANE}        ; n")
    e(f"  v_lshrrev_b32 v{vT2}, 4, v{vLANE}     ; rg")
    e(f"  v_lshrrev_b32 v{vT3}, 3, v{vT1}       ; half")
    e(f"  v_lshrrev_b32 v{vT0}, 1, v{vT2}")
    e(f"  v_cmp_eq_u32 s[46:47], v{vT3}, v{vT0}")
    e(f"  v_mul_u32_u24 v{vFA+1}, 800, v{vT3}    ; half*800")
    e(f"  v_and_b32 v{vT1}, 7, v{vT1}")
    e(f"  v_lshlrev_b32 v{vT1}, 5, v{vT1}")
    e(f"  v_and_b32 v{vT2}, 1, v{vT2}")
    e(f"  v_lshlrev_b32 v{vT2}, 4, v{vT2}")
    e(f"  v_add3_u32 v{vFA}, v{vFA+1}, v{vT1}, v{vT2}")
    e(f"  v_add_u32 v{vFA}, s43, v{vFA}")
    e(f"  v_add_u32 v{vFA+1}, s43, v{vFA+1}")
    est()

    def advance():
        e(f"  s_add_u32 s37, s37, {step}")
        if rot:
            e(f"  s_cmp_ge_u32 s37, {head_bytes}")
            e(f"  s_cselect_b32 s44, {head_bytes}, 0")
            e(f"  s_sub_u32 s37, s37, s44")
        e(f"  s_add_u32 s39, s36, s37")
    def dots(rK):
        for s in range(3):
            acc = [vS, vS2, vS3][s]
            r = rK + s * 4
            for j in range(4):
                if j == 0: e(f"  v_dot2_f32_bf16 v{acc}, v{r}, v{vQ+4*s}, 0")
                else: e(f"  v_dot2_f32_bf16 v{acc}, v{r+j}, v{vQ+4*s+j}, v{acc}")
    def softmax():
        e("  s_nop 2")
        e(f"  v_add_f32 v{vS2}, v{vS2}, v{vS3}")
        e(f"  v_add_f32 v{vS}, v{vS}, v{vS2}")
        for mod in ["quad_perm:[1,0,3,2]", "quad_perm:[2,3,0,1]", "row_half_mirror"]:
            e("  s_nop 1")
            e(f"  v_add_f32_dpp v{vS}, v{vS}, v{vS} {mod} row_mask:0xf bank_mask:0xf")
        e(f"  v_max_f32 v{vT0}, v{vS}, v{vM}")
        e("  s_nop 1")
        e(f"  v_max_f32_dpp v{vT0}, v{vT0}, v{vT0} row_ror:8 row_mask:0xf bank_mask:0xf")
        e(f"  v_mov_b32 v{vT1}, v{vT0}")
        e("  s_nop 1")
        e(f"  v_permlane16_swap_b32 v{vT0}, v{vT1}")
        e(f"  v_max_f32 v{vT0}, v{vT0}, v{vT1}")
        e(f"  v_mov_b32 v{vT1}, v{vT0}")
        e("  s_nop 1")
        e(f"  v_permlane32_swap_b32 v{vT0}, v{vT1}")
        e(f"  v_max_f32 v{vT0}, v{vT0}, v{vT1}       ; m_new")
        e(f"  v_sub_f32 v{vAL}, v{vM}, v{vT0}")
        e(f"  v_mul_f32 v{vMC}, s40, v{vT0}")
        e(f"  v_mul_f32 v{vAL}, s40, v{vAL}")
        e(f"  v_mov_b32 v{vM}, v{vT0}")
        e(f"  v_exp_f32 v{vAL}, v{vAL}")
        e(f"  v_fma_f32 v{vS}, v{vS}, s40, -v{vMC}")
        e(f"  v_exp_f32 v{vS}, v{vS}")
        for i in range(16): e(f"  v_mul_f32 v{vD+i}, v{vD+i}, v{vAL}")
        e(f"  v_cvt_pk_bf16_f32 v{vS2}, v{vS}, v{vS}")
        for i in range(4): e(f"  v_and_b32 v{vA+i}, v{vS2}, v{vMASK+i}")
    def pv(rV):
        e("  s_nop 0")
        for s in range(3):
            r = rV + s * 4
            e(f"  v_mfma_f32_16x16x32_bf16 v[{vD+4*s}:{vD+4*s+3}], v[{vA}:{vA+3}], v[{r}:{r+3}], v[{vD+4*s}:{vD+4*s+3}]")
        e(f"  v_mfma_f32_16x16x32_bf16 v[{vD+12}:{vD+15}], v[{vA}:{vA+3}], v[{vONE}:{vONE+3}], v[{vD+12}:{vD+15}]")

    e(f"{lab('loop')}:")
    e(f"  s_waitcnt vmcnt(3)")
    if estamp:
        e(f"  s_cmp_lg_u32 s41, {N}")
        e(f"  s_cbranch_scc1 {lab('nost')}")
        est()
        e(f"{lab('nost')}:")
    dots(vK)
    e(f"  s_cmp_eq_u32 s41, {D+1}")
    e(f"  s_cbranch_scc1 {lab('burst')}")
    advance()
    issue(vK, 8)
    softmax()
    e(f"  s_waitcnt vmcnt(3)")
    pv(vV)
    issue(vV, 12)
    e("  s_sub_u32 s41, s41, 1")
    e(f"  s_branch {lab('loop')}")
    e(f"{lab('burst')}:")
    for d in range(D):
        advance()
        issue(vB + d * 24, 8)
        issue(vB + d * 24 + 12, 12)
    e("  s_cmp_lg_u32 s32, 0")
    e(f"  s_cbranch_scc1 {lab('noann')}")
    e(f"  v_and_b32 v{vST+3}, 0xff, v{vST+3}")
    e(f"  s_mov_b32 s52, 1")
    e(f"  s_mov_b64 exec, 0x1ffffffffffff        ; lanes 0..48") if False else None
    e(f"  v_cmp_gt_u32 s[48:49], 49, v{vLANE}")
    e(f"{lab('tagloop')}:")
    e(f"  v_cmp_eq_u32 vcc, s52, v{vST+3}")
    e("  s_nop 1")
    e("  s_and_b64 vcc, vcc, s[48:49]")
    e(f"  s_cbranch_scc0 {lab('tagok')}")
    e("  s_add_u32 s52, s52, 1")
    e(f"  s_branch {lab('tagloop')}")
    e(f"{lab('tagok')}:")
    e("  s_and_b32 s53, s33, 1")
    e("  s_lshl_b32 s53, s53, 1")
    e("  s_add_u32 s53, s53, s34")
    e("  s_lshl_b32 s53, s53, 3")
    e("  s_lshl_b32 s54, s52, s53")
    e("  s_lshr_b32 s55, s33, 1")
    e("  s_lshl_b32 s55, s55, 2")
    e(f"  v_mov_b32 v{vAT}, s54")
    e(f"  v_mov_b32 v{vT0}, s55")
    e("  s_mov_b64 exec, 1")
    e(f"  buffer_atomic_or v{vAT}, v{vT0}, s[24:27], 0 offen sc0 sc1")
    e("  s_mov_b64 exec, -1")
    e(f"{lab('noann')}:")
    softmax()
    e(f"  s_waitcnt vmcnt({min(63, 6*D)})")
    pv(vV)
    for d in range(D):
        rem = 6 * (D - d)
        last = d == D - 1
        if last and spec_at:
            e("  s_cmp_lg_u32 s32, 0")
            e(f"  s_cbranch_scc1 {lab('nospec')}")
            e(f"  v_lshlrev_b32 v{vT0}, 4, v{vLANE}")
            e(f"  buffer_load_dwordx4 v[{vST}:{vST+3}], v{vT0}, s[28:31], s51 offen sc1")
            e(f"  s_waitcnt vmcnt(5)")
            dots(vB + d * 24)
            softmax()
            e(f"  s_waitcnt vmcnt(2)")
            pv(vB + d * 24 + 12)
            e(f"  s_branch {lab('flush')}")
            e(f"{lab('nospec')}:")
        e(f"  s_waitcnt vmcnt({min(63, rem - 3)})")
        dots(vB + d * 24)
        softmax()
        e(f"  s_waitcnt vmcnt({min(63, rem - 6)})")
        pv(vB + d * 24 + 12)
    e(f"{lab('flush')}:")
    e("  s_nop 7")
    e(f"  v_mov_b32 v{vLM}, v{vD+12}")
    e(f"  v_mov_b32 v{vLM+1}, v{vM}")
    e("  s_mov_b64 exec, s[46:47]")
    for s in range(3):
        e(f"  ds_write_b128 v{vFA}, v[{vD+4*s}:{vD+4*s+3}] offset:{256*s}")
    e(f"  ds_write_b64 v{vFA+1}, v[{vLM}:{vLM+1}] offset:768")
    e("  s_mov_b64 exec, -1")
    est()
    e("  s_waitcnt lgkmcnt(0)")
    e("  s_barrier")
    est()
    e("  s_cmp_lg_u32 s32, 0")
    e(f"  s_cbranch_scc1 {lab('end')}")
    e(f"  v_min_u32 v{vT1}, 47, v{vLANE}")
    e(f"  v_lshlrev_b32 v{vT1}, 4, v{vT1}      ; chunk*16")
    e(f"  v_mov_b32 v{vT0}, 0")
    R0 = X
    O0 = (X + 4 * W + 3) // 4 * 4
    need = O0 + 8 * W
    for w in range(W):
        for h in range(2):
            e(f"  ds_read_b64 v[{R0+4*w+2*h}:{R0+4*w+2*h+1}], v{vT0} offset:{w*REC + h*800 + 768}")
    for w in range(W):
        for h in range(2):
            r = O0 + (w * 2 + h) * 4
            e(f"  ds_read_b128 v[{r}:{r+3}], v{vT1} offset:{w*REC + h*800}")
    e(f"  s_waitcnt lgkmcnt({0 if estamp else 2*W})")
    rO = vD; rM = vM; rL = vAL
    e(f"  v_max_f32 v{rM}, v{R0+1}, v{R0+5}")
    for w in range(2, W): e(f"  v_max_f32 v{rM}, v{rM}, v{R0+4*w+1}")
    for w in range(W):
        e(f"  v_sub_f32 v{R0+4*w+1}, v{R0+4*w+1}, v{rM}")
        e(f"  v_add_f32 v{R0+4*w}, v{R0+4*w}, v{R0+4*w+2}      ; l halves")
    for w in range(W): e(f"  v_mul_f32 v{R0+4*w+1}, s40, v{R0+4*w+1}")
    for w in range(W): e(f"  v_exp_f32 v{R0+4*w+1}, v{R0+4*w+1}")
    e("  s_waitcnt lgkmcnt(0)")
    for w in range(W):
        for j in range(4): e(f"  v_add_f32 v{O0+w*8+j}, v{O0+w*8+j}, v{O0+w*8+4+j}")
    e(f"  v_mul_f32 v{rL}, v{R0+1}, v{R0}")
    for j in range(4): e(f"  v_mul_f32 v{rO+j}, v{R0+1}, v{O0+j}")
    for w in range(1, W):
        e(f"  v_fmac_f32 v{rL}, v{R0+4*w+1}, v{R0+4*w}")
        for j in range(4): e(f"  v_fmac_f32 v{rO+j}, v{R0+4*w+1}, v{O0+w*8+j}")
    est()
    e("  s_waitcnt vmcnt(0)")
    e(f"  v_readfirstlane_b32 s54, v{vAT}")
    e("  s_xor_b32 s53, s53, 8")
    e("  s_nop 2")
    e("  s_lshr_b32 s54, s54, s53")
    e("  s_and_b32 s54, s54, 0xff")
    e("  s_cmp_lg_u32 s54, 0")
    e(f"  s_cbranch_scc1 {lab('merge')}")
    e(f"  v_cmp_eq_u32 vcc, 48, v{vLANE}")
    e(f"  v_and_b32 v{O0+3}, 0xffffff00, v{rO+3}")
    e(f"  v_lshlrev_b32 v{vT0}, 4, v{vLANE}")
    e(f"  v_cndmask_b32 v{O0}, v{rO}, v{rM}, vcc")
    e(f"  v_cndmask_b32 v{O0+1}, v{rO+1}, v{rL}, vcc")
    e(f"  v_mov_b32 v{O0+2}, v{rO+2}")
    e(f"  v_or_b32 v{O0+3}, s52, v{O0+3}")
    e("  s_mov_b64 exec, s[48:49]")
    e(f"  buffer_store_dwordx4 v[{O0}:{O0+3}], v{vT0}, s[28:31], s50 offen sc1")
    e("  s_mov_b64 exec, -1")
    e(f"  s_branch {lab('fin')}")
    e(f"{lab('merge')}:")
    if not spec_at:
        e(f"  v_lshlrev_b32 v{vT0}, 4, v{vLANE}")
        e(f"  buffer_load_dwordx4 v[{vST}:{vST+3}], v{vT0}, s[28:31], s51 offen sc1")
        e("  s_waitcnt vmcnt(0)")
    e(f"{lab('check')}:")
    e(f"  v_and_b32 v{vT2}, 0xff, v{vST+3}")
    e(f"  v_cmp_ne_u32 vcc, s54, v{vT2}")
    e("  s_nop 1")
    e("  s_and_b64 vcc, vcc, s[48:49]")
    e(f"  s_cbranch_scc0 {lab('valid')}")
    e(f"  v_lshlrev_b32 v{vT0}, 4, v{vLANE}")
    e(f"  buffer_load_dwordx4 v[{vST}:{vST+3}], v{vT0}, s[28:31], s51 offen sc1")
    e("  s_waitcnt vmcnt(0)")
    e(f"  s_branch {lab('check')}")
    e(f"{lab('valid')}:")
    est()
    e(f"  v_readlane_b32 s58, v{vST}, 48         ; partner M")
    e(f"  v_readlane_b32 s59, v{vST+1}, 48       ; partner L")
    e("  s_nop 1")
    e(f"  v_max_f32 v{vT0}, s58, v{rM}")
    e(f"  v_sub_f32 v{vT1}, v{rM}, v{vT0}")
    e(f"  v_sub_f32 v{vT2}, s58, v{vT0}")
    e(f"  v_mul_f32 v{vT1}, s40, v{vT1}")
    e(f"  v_mul_f32 v{vT2}, s40, v{vT2}")
    e(f"  v_exp_f32 v{vT1}, v{vT1}")
    e(f"  v_exp_f32 v{vT2}, v{vT2}")
    e("  s_nop 0")
    e(f"  v_mul_f32 v{rL}, v{vT1}, v{rL}")
    for j in range(4): e(f"  v_mul_f32 v{rO+j}, v{vT1}, v{rO+j}")
    e(f"  v_fmac_f32 v{rL}, s59, v{vT2}")
    for j in range(4): e(f"  v_fmac_f32 v{rO+j}, v{vT2}, v{vST+j}")
    e(f"  v_rcp_f32 v{rL}, v{rL}")
    e("  s_nop 0")
    for j in range(4): e(f"  v_mul_f32 v{rO+j}, v{rO+j}, v{rL}")
    e(f"  v_cvt_pk_bf16_f32 v{vD+4}, v{rO}, v{rO+1}")
    e(f"  v_cvt_pk_bf16_f32 v{vD+5}, v{rO+2}, v{rO+3}")
    e(f"  v_lshlrev_b32 v{vT2}, 3, v{vLANE}")
    e(f"  v_cmp_gt_u32 vcc, 48, v{vLANE}")
    e("  s_and_saveexec_b64 s[48:49], vcc")
    e(f"  buffer_store_dwordx2 v[{vD+4}:{vD+5}], v{vT2}, s[20:23], s45 offen")
    e("  s_mov_b64 exec, s[48:49]")
    e(f"{lab('fin')}:")
    if estamp:
        e("  s_mov_b64 exec, -1")
        e("  s_waitcnt vmcnt(0)")
        e("  s_memrealtime s[90:91]")
        e("  s_waitcnt lgkmcnt(0)")
        e(f"  v_mov_b32 v20, 0")
        for i in range(12): e(f"  v_writelane_b32 v20, s{60+2*i}, {i}")
        e(f"  v_writelane_b32 v20, s90, 15")
        e(f"  s_lshl_b32 s46, s2, 6")
        e(f"  s_add_u32 s46, s46, 0x2A000000")
        e(f"  v_lshlrev_b32 v21, 2, v{vLANE}")
        e(f"  v_cmp_gt_u32 vcc, 16, v{vLANE}")
        e(f"  s_and_saveexec_b64 s[48:49], vcc")
        e(f"  buffer_store_dword v20, v21, s[28:31], s46 offen")
        e(f"  s_mov_b64 exec, s[48:49]")
    if stamp:
        e("  s_mov_b64 exec, -1")
        e("  s_waitcnt vmcnt(0)")
        e("  s_memrealtime s[92:93]")
        e("  s_waitcnt lgkmcnt(0)")
        e("  s_lshl_b32 s44, s2, 4")
        e("  s_add_u32 s44, s44, 0x28000000")
        e("  v_mov_b32 v8, s56")
        e("  v_mov_b32 v9, s57")
        e("  v_mov_b32 v10, s92")
        e("  v_mov_b32 v11, s93")
        e("  v_mov_b32 v12, 0")
        e("  s_mov_b64 exec, 1")
        e("  buffer_store_dwordx4 v[8:11], v12, s[28:31], s44 offen")
    e(f"{lab('end')}:")
    e("  s_endpgm")
    L = [x for x in L if x is not None]
    nv = max(nv, need)
    return head(name) + "\n".join(L) + "\n" + kd(name, nv, 96), (name, nv, 96, W * 64), (NWG, W * 64, lds)

if __name__ == "__main__":
    if sys.argv[1] == "--final":
        v = json.loads(sys.argv[3])
        t, k, (g, b, lds) = gen(NAME, **v)
        text = HDR + f"; @launch grid=({g},1,1) block=({b},1,1) lds={lds}\n" + '.amdgcn_target "amdgcn-amd-amdhsa--gfx950"\n' + t
        open(sys.argv[2], "w").write(text)
        print("vgprs", k[1])
    else:
        variants = json.loads(sys.argv[2])
        text = '.amdgcn_target "amdgcn-amd-amdhsa--gfx950"\n'
        ks = []; specs = []
        for i, v in enumerate(variants):
            nm = v.pop("name", f"k{i}") + "_kernel"
            t, k, (g, b, lds) = gen(nm, **v)
            text += t; ks.append(k); specs.append(f"{nm},{g},{b},{lds}")
        co = build(sys.argv[1], text, ks)
        print(" ".join(f"{co.split('/')[-1]}:{s}" for s in specs))
```

```python
import sys, json, math, struct
from asmlib import *

NAME = "standalone__softmax_full_bidir__decode_kernel"
HDR = """; Kernarg layout for this problem (48 bytes, ptrs only, base s[0:1]):
"""
KBYTES = 128 * 4096 * 384
WSBYTES = 805306368

def gen(name=NAME, NC=16, LEAD=3, F=1, flags="nt", aflags="sc0 sc1", stamp=False, ldsmin=84000, pairx=5, rotmul=0x9E3779B1, rotshift=16, estamp=False, sleep=2):
    NWG = 256; W = 4; GB = 3072
    head_bytes = 4096 * 384
    S = 256 - 2 * NC
    assert S % 4 == 0 and NC + 4 <= 60 and NC % F == 0
    TRIG = S - 4 * LEAD
    cscale = (192 ** -0.5) * math.log2(math.e)
    cbits = struct.unpack("<I", struct.pack("<f", cscale))[0]
    REC = 1600
    CTR = W * REC; DONE = CTR + 4; TAB = CTR + 16
    lds = max(TAB + 256 + 64, ldsmin)
    CTRWS = 0x100000
    vOFF = 1; vLANE = 2
    vT0, vT1, vT2, vT3 = 3, 4, 5, 6
    vM = 7; vAL = 8; vMC = 9
    vFA = 10; vLM = 12; vAT = 14; vTK = 15
    vMASK = 16; vONE = 20; vD = 24; vQ = 40; vA = 52
    vS, vS2, vS3 = 56, 57, 58
    vTA = 59
    vST = 60
    vK = 64; vV = 76
    vCH = 88; vZ = 89
    X = 92
    L = []; e = L.append
    lab = lambda s: f"L_{s}_{name}"
    ecount = [0]
    def est():
        if estamp:
            i = ecount[0]; ecount[0] += 1
            e(f"  s_memrealtime s[{60+2*i}:{61+2*i}]")
    e(f"  s_cmp_ge_u32 s2, {NWG}")
    e(f"  s_cbranch_scc1 {lab('end')}")
    e("  s_load_dwordx2 s[8:9], s[0:1], 8       ; k")
    e("  s_load_dwordx2 s[16:17], s[0:1], 0     ; q")
    e("  s_load_dwordx2 s[12:13], s[0:1], 16    ; v")
    e("  s_load_dwordx2 s[20:21], s[0:1], 24    ; out")
    e("  s_load_dwordx2 s[24:25], s[0:1], 32    ; dbg")
    e("  s_load_dwordx2 s[28:29], s[0:1], 40    ; ws")
    if stamp: e("  s_memrealtime s[56:57]")
    if estamp:
        for i in range(1, 12): e(f"  s_mov_b32 s{60+2*i}, 0")
    est()
    e(f"  v_lshrrev_b32 v{vT0}, 6, v0          ; wave")
    e(f"  v_and_b32 v{vLANE}, 63, v0")
    e(f"  v_readfirstlane_b32 s32, v{vT0}")
    e(f"  v_lshrrev_b32 v{vT1}, 3, v{vLANE}")
    e(f"  v_mul_u32_u24 v{vT1}, 384, v{vT1}")
    e(f"  v_and_b32 v{vT2}, 7, v{vLANE}        ; chunk c")
    e(f"  v_lshlrev_b32 v{vT3}, 4, v{vT2}      ; c*16")
    e(f"  v_add_u32 v{vOFF}, v{vT1}, v{vT3}")
    b = pairx.bit_length() - 1
    e(f"  s_bfe_u32 s34, s2, {b | (1 << 16)}      ; member")
    e(f"  s_mul_i32 s44, s34, {pairx}")
    e(f"  s_xor_b32 s44, s44, s2")
    e(f"  s_lshr_b32 s33, s44, {b+1}")
    e(f"  s_lshl_b32 s33, s33, {b}")
    if b:
        e(f"  s_and_b32 s44, s44, {(1 << b) - 1}")
        e(f"  s_or_b32 s33, s33, s44              ; head")
    for r, v in [(10, KBYTES), (11, 0x20000), (14, KBYTES), (15, 0x20000), (18, 49152), (19, 0x20000), (22, 49152), (23, 0x20000),
                 (26, 256), (27, 0x20000), (30, WSBYTES), (31, 0x20000)]:
        e(f"  s_mov_b32 s{r}, 0x{v:x}")
    e(f"  s_mul_i32 s36, s33, {head_bytes}")
    e(f"  s_mul_i32 s37, s33, 0x{rotmul & 0xffffffff:x}")
    e(f"  s_lshr_b32 s37, s37, {rotshift}")
    e(f"  s_and_b32 s37, s37, 63")
    e(f"  s_lshl_b32 s37, s37, 3")
    e(f"  s_lshl_b32 s35, s34, 2                ; member*4")
    e(f"  s_add_u32 s44, s35, s32")
    def addr_g(g):
        e(f"  s_add_u32 s39, {g}, s37")
        e(f"  s_and_b32 s39, s39, 511")
        e(f"  s_mul_i32 s39, s39, {GB}")
        e(f"  s_add_u32 s39, s39, s36")
    addr_g("s44")
    e(f"  s_mul_i32 s45, s33, 384")
    e(f"  v_mov_b32 v{vTA}, {CTR}")
    e(f"  s_cmp_eq_u32 s32, {W}")
    e(f"  s_cbranch_scc1 {lab('helper')}")
    e("  s_waitcnt lgkmcnt(0)")
    def issue(base, srd):
        for s in range(3):
            r = base + s * 4
            e(f"  buffer_load_dwordx4 v[{r}:{r+3}], v{vOFF}, s[{srd}:{srd+3}], s39 offen offset:{128*s} {flags}")
    issue(vK, 8)
    for s in range(3):
        e(f"  buffer_load_dwordx4 v[{vQ+4*s}:{vQ+4*s+3}], v{vT3}, s[16:19], s45 offen offset:{128*s}")
    issue(vV, 12)
    for i in range(4): e(f"  v_mov_b32 v{vMASK+i}, 0")
    e(f"  v_and_b32 v{vT0}, 1, v{vT2}")
    e(f"  v_lshlrev_b32 v{vT0}, 4, v{vT0}")
    e(f"  v_mov_b32 v{vT1}, 0xffff")
    e(f"  v_lshlrev_b32 v{vT1}, v{vT0}, v{vT1}")
    e(f"  v_lshrrev_b32 v{vT0}, 1, v{vT2}       ; c>>1")
    for i in range(4):
        e(f"  v_cmp_eq_u32 vcc, {i}, v{vT0}")
        e(f"  v_mov_b32 v{vONE+i}, 0x3f803f80")
        e(f"  s_nop 0")
        e(f"  v_cndmask_b32 v{vMASK+i}, v{vMASK+i}, v{vT1}, vcc")
    for i in range(16): e(f"  v_mov_b32 v{vD+i}, 0")
    e(f"  v_mov_b32 v{vM}, 0xff7fffff")
    e(f"  s_mov_b32 s40, 0x{cbits:08x}      ; scale*log2e")
    e(f"  s_mul_i32 s43, s32, {REC}")
    e(f"  v_and_b32 v{vT1}, 15, v{vLANE}        ; n")
    e(f"  v_lshrrev_b32 v{vT2}, 4, v{vLANE}     ; rg")
    e(f"  v_lshrrev_b32 v{vT3}, 3, v{vT1}       ; half")
    e(f"  v_lshrrev_b32 v{vT0}, 1, v{vT2}")
    e(f"  v_cmp_eq_u32 s[46:47], v{vT3}, v{vT0}")
    e(f"  v_mul_u32_u24 v{vFA+1}, 800, v{vT3}    ; half*800")
    e(f"  v_and_b32 v{vT1}, 7, v{vT1}")
    e(f"  v_lshlrev_b32 v{vT1}, 5, v{vT1}")
    e(f"  v_and_b32 v{vT2}, 1, v{vT2}")
    e(f"  v_lshlrev_b32 v{vT2}, 4, v{vT2}")
    e(f"  v_add3_u32 v{vFA}, v{vFA+1}, v{vT1}, v{vT2}")
    e(f"  v_add_u32 v{vFA}, s43, v{vFA}")
    e(f"  v_add_u32 v{vFA+1}, s43, v{vFA+1}")
    e("  s_barrier")
    def dots(rK):
        for s in range(3):
            acc = [vS, vS2, vS3][s]
            r = rK + s * 4
            for j in range(4):
                if j == 0: e(f"  v_dot2_f32_bf16 v{acc}, v{r}, v{vQ+4*s}, 0")
                else: e(f"  v_dot2_f32_bf16 v{acc}, v{r+j}, v{vQ+4*s+j}, v{acc}")
    def softmax():
        e("  s_nop 2")
        e(f"  v_add_f32 v{vS2}, v{vS2}, v{vS3}")
        e(f"  v_add_f32 v{vS}, v{vS}, v{vS2}")
        for mod in ["quad_perm:[1,0,3,2]", "quad_perm:[2,3,0,1]", "row_half_mirror"]:
            e("  s_nop 1")
            e(f"  v_add_f32_dpp v{vS}, v{vS}, v{vS} {mod} row_mask:0xf bank_mask:0xf")
        e(f"  v_max_f32 v{vT0}, v{vS}, v{vM}")
        e("  s_nop 1")
        e(f"  v_max_f32_dpp v{vT0}, v{vT0}, v{vT0} row_ror:8 row_mask:0xf bank_mask:0xf")
        e(f"  v_mov_b32 v{vT1}, v{vT0}")
        e("  s_nop 1")
        e(f"  v_permlane16_swap_b32 v{vT0}, v{vT1}")
        e(f"  v_max_f32 v{vT0}, v{vT0}, v{vT1}")
        e(f"  v_mov_b32 v{vT1}, v{vT0}")
        e("  s_nop 1")
        e(f"  v_permlane32_swap_b32 v{vT0}, v{vT1}")
        e(f"  v_max_f32 v{vT0}, v{vT0}, v{vT1}       ; m_new")
        e(f"  v_sub_f32 v{vAL}, v{vM}, v{vT0}")
        e(f"  v_mul_f32 v{vMC}, s40, v{vT0}")
        e(f"  v_mul_f32 v{vAL}, s40, v{vAL}")
        e(f"  v_mov_b32 v{vM}, v{vT0}")
        e(f"  v_exp_f32 v{vAL}, v{vAL}")
        e(f"  v_fma_f32 v{vS}, v{vS}, s40, -v{vMC}")
        e(f"  v_exp_f32 v{vS}, v{vS}")
        for i in range(16): e(f"  v_mul_f32 v{vD+i}, v{vD+i}, v{vAL}")
        e(f"  v_cvt_pk_bf16_f32 v{vS2}, v{vS}, v{vS}")
        for i in range(4): e(f"  v_and_b32 v{vA+i}, v{vS2}, v{vMASK+i}")
    def pv(rV):
        e("  s_nop 0")
        for s in range(3):
            r = rV + s * 4
            e(f"  v_mfma_f32_16x16x32_bf16 v[{vD+4*s}:{vD+4*s+3}], v[{vA}:{vA+3}], v[{r}:{r+3}], v[{vD+4*s}:{vD+4*s+3}]")
        e(f"  v_mfma_f32_16x16x32_bf16 v[{vD+12}:{vD+15}], v[{vA}:{vA+3}], v[{vONE}:{vONE+3}], v[{vD+12}:{vD+15}]")
    e(f"{lab('loop')}:")
    e(f"  v_mov_b32 v{vTK}, 1")
    e("  s_mov_b64 exec, 1")
    e(f"  ds_add_rtn_u32 v{vTK}, v{vTA}, v{vTK}")
    e("  s_mov_b64 exec, -1")
    e(f"  s_waitcnt vmcnt(3)")
    dots(vK)
    e("  s_waitcnt lgkmcnt(0)")
    e(f"  v_readfirstlane_b32 s41, v{vTK}")
    e("  s_nop 3")
    e(f"  s_cmp_ge_u32 s41, {S}")
    e(f"  s_cbranch_scc1 {lab('zone')}")
    e("  s_lshr_b32 s44, s41, 2")
    e("  s_lshl_b32 s44, s44, 3")
    e("  s_add_u32 s44, s44, s35")
    e(f"{lab('haveg')}:")
    e("  s_and_b32 s54, s41, 3")
    e("  s_add_u32 s44, s44, s54")
    addr_g("s44")
    issue(vK, 8)
    softmax()
    e(f"  s_waitcnt vmcnt(3)")
    pv(vV)
    issue(vV, 12)
    e(f"  s_branch {lab('loop')}")
    e(f"{lab('zone')}:")
    e(f"  s_sub_u32 s44, s41, {S}")
    e("  s_and_b32 s44, s44, 0xfffffffc        ; slot*4")
    e(f"  v_mov_b32 v{vT2}, s44")
    e(f"{lab('spin')}:")
    e(f"  ds_read_b32 v{vT3}, v{vT2} offset:{TAB}")
    e("  s_waitcnt lgkmcnt(0)")
    e(f"  v_readfirstlane_b32 s44, v{vT3}")
    e("  s_nop 3")
    e("  s_cmp_eq_u32 s44, -1")
    e(f"  s_cbranch_scc1 {lab('spin')}")
    e(f"  s_cmp_ge_u32 s44, {NC}")
    e(f"  s_cbranch_scc1 {lab('term')}")
    e("  s_lshl_b32 s44, s44, 2")
    e(f"  s_add_u32 s44, s44, {2*S}")
    e(f"  s_branch {lab('haveg')}")
    e(f"{lab('term')}:")
    softmax()
    e("  s_waitcnt vmcnt(0)")
    pv(vV)
    e("  s_nop 7")
    e(f"  v_mov_b32 v{vLM}, v{vD+12}")
    e(f"  v_mov_b32 v{vLM+1}, v{vM}")
    e("  s_mov_b64 exec, s[46:47]")
    for s in range(3):
        e(f"  ds_write_b128 v{vFA}, v[{vD+4*s}:{vD+4*s+3}] offset:{256*s}")
    e(f"  ds_write_b64 v{vFA+1}, v[{vLM}:{vLM+1}] offset:768")
    e("  s_mov_b64 exec, 1")
    e(f"  v_mov_b32 v{vTK}, 1")
    e("  s_waitcnt lgkmcnt(0)")
    e(f"  ds_add_u32 v{vTA}, v{vTK} offset:4")
    e("  s_waitcnt lgkmcnt(0)")
    e("  s_endpgm")
    e(f"{lab('helper')}:")
    e(f"  v_mov_b32 v{vTK}, {W}")
    e(f"  v_mov_b32 v{vZ}, 0")
    e(f"  v_lshlrev_b32 v{vT0}, 2, v{vLANE}")
    e(f"  v_mov_b32 v{vT1}, -1")
    e(f"  ds_write_b32 v{vT0}, v{vT1} offset:{TAB}       ; 64 slots = -1")
    e("  s_mov_b64 exec, 1")
    e(f"  ds_write_b32 v{vTA}, v{vTK}")
    e(f"  ds_write_b32 v{vTA}, v{vZ} offset:4")
    e("  s_mov_b64 exec, -1")
    e(f"  s_lshl_b32 s50, s33, 11")
    e(f"  s_lshl_b32 s44, s34, 10")
    e(f"  s_add_u32 s50, s50, s44")
    e(f"  s_xor_b32 s51, s50, 1024")
    e(f"  s_mul_i32 s95, s33, 4352")
    e(f"  s_add_u32 s95, s95, {CTRWS}")
    e("  s_and_b32 s53, s33, 1")
    e("  s_lshl_b32 s53, s53, 1")
    e("  s_add_u32 s53, s53, s34")
    e("  s_lshl_b32 s53, s53, 3")
    e("  s_lshr_b32 s55, s33, 1")
    e("  s_lshl_b32 s55, s55, 2")
    e(f"  s_mov_b32 s40, 0x{cbits:08x}")
    e(f"  v_lshlrev_b32 v{vFA}, 4, v{vLANE}      ; lane*16")
    e(f"  v_cmp_gt_u32 s[48:49], 49, v{vLANE}")
    e(f"  v_mov_b32 v{vMC}, s55")
    e("  s_waitcnt lgkmcnt(0)")
    e("  s_barrier")
    est()
    e(f"  buffer_load_dwordx4 v[{vST}:{vST+3}], v{vFA}, s[28:31], s50 offen sc1")
    e("  s_cmp_lg_u32 s34, 0")
    e(f"  s_cbranch_scc1 {lab('noctr')}")
    e("  s_mov_b64 exec, 1")
    e(f"  buffer_store_dword v{vZ}, v{vZ}, s[28:31], s95 offen sc1")
    e("  s_waitcnt vmcnt(0)")
    e("  s_lshl_b32 s44, 64, s53")
    e(f"  v_mov_b32 v{vT0}, s44")
    e(f"  buffer_atomic_or v{vT0}, v{vMC}, s[24:27], 0 offen sc1")
    e("  s_mov_b64 exec, -1")
    e(f"{lab('noctr')}:")
    e("  s_waitcnt vmcnt(0)")
    e(f"  v_and_b32 v{vST+3}, 63, v{vST+3}")
    e(f"  s_mov_b32 s52, 1")
    e(f"{lab('tagloop')}:")
    e(f"  v_cmp_eq_u32 vcc, s52, v{vST+3}")
    e("  s_nop 1")
    e("  s_and_b64 vcc, vcc, s[48:49]")
    e(f"  s_cbranch_scc0 {lab('tagok')}")
    e("  s_add_u32 s52, s52, 1")
    e(f"  s_branch {lab('tagloop')}")
    e(f"{lab('tagok')}:")
    e("  s_cmp_eq_u32 s34, 0")
    e(f"  s_cbranch_scc1 {lab('ready')}")
    e(f"{lab('rdy')}:")
    e(f"  buffer_load_dword v{vT3}, v{vMC}, s[24:27], 0 offen sc1")
    e("  s_waitcnt vmcnt(0)")
    e(f"  v_readfirstlane_b32 s44, v{vT3}")
    e("  s_nop 3")
    e("  s_and_b32 s54, s53, 16")
    e("  s_add_u32 s54, s54, 6")
    e("  s_lshr_b32 s44, s44, s54")
    e("  s_and_b32 s44, s44, 1")
    e(f"  s_cbranch_scc1 {lab('ready')}")
    e("  s_sleep 8")
    e(f"  s_branch {lab('rdy')}")
    e(f"{lab('ready')}:")
    e("  s_mov_b32 s94, 0")
    e(f"  s_mov_b32 s96, {TRIG}")
    e(f"{lab('floop')}:")
    e(f"  ds_read_b32 v{vT3}, v{vTA}")
    e("  s_waitcnt lgkmcnt(0)")
    e(f"  v_readfirstlane_b32 s44, v{vT3}")
    e("  s_nop 3")
    e("  s_cmp_ge_u32 s44, s96")
    e(f"  s_cbranch_scc1 {lab('fetch')}")
    e(f"  s_add_u32 s44, s44, 24")
    e(f"  s_cmp_ge_u32 s44, s96")
    e(f"  s_cbranch_scc1 {lab('near')}")
    e("  s_sleep 24")
    e(f"  s_branch {lab('floop')}")
    e(f"{lab('near')}:")
    e(f"  s_sleep {sleep}")
    e(f"  s_branch {lab('floop')}")
    e(f"{lab('fetch')}:")
    e(f"  v_mov_b32 v{vCH}, {F}")
    e("  s_mov_b64 exec, 1")
    e(f"  buffer_atomic_add v{vCH}, v{vZ}, s[28:31], s95 offen {aflags}")
    e("  s_mov_b64 exec, -1")
    e("  s_waitcnt vmcnt(0)")
    e(f"  v_readfirstlane_b32 s44, v{vCH}")
    e("  s_lshl_b32 s54, s94, 2")
    e(f"  v_lshl_add_u32 v{vT0}, v{vLANE}, 2, s54")
    e("  s_nop 1")
    e(f"  v_add_u32 v{vT1}, s44, v{vLANE}")
    e(f"  s_add_u32 s54, s44, {F}")
    e(f"  s_cmp_ge_u32 s54, {NC}")
    e(f"  s_cbranch_scc1 {lab('exhaust')}")
    e(f"  s_mov_b64 exec, {(1 << F) - 1}")
    e(f"  ds_write_b32 v{vT0}, v{vT1} offset:{TAB}")
    e("  s_mov_b64 exec, -1")
    e(f"  s_add_u32 s94, s94, {F}")
    e(f"  s_add_u32 s96, s96, {4 * F}")
    e(f"  s_branch {lab('floop')}")
    e(f"{lab('exhaust')}:")
    e("  s_mov_b64 exec, 0xff")
    e(f"  ds_write_b32 v{vT0}, v{vT1} offset:{TAB}")
    e("  s_mov_b64 exec, -1")
    e("  s_lshl_b32 s54, s52, s53")
    e(f"  v_mov_b32 v{vAT}, s54")
    e("  s_mov_b64 exec, 1")
    e(f"  buffer_atomic_or v{vAT}, v{vMC}, s[24:27], 0 offen sc0 sc1")
    e("  s_mov_b64 exec, -1")
    e("  s_waitcnt vmcnt(0)")
    e(f"  v_readfirstlane_b32 s54, v{vAT}")
    e("  s_xor_b32 s53, s53, 8")
    e("  s_nop 2")
    e("  s_lshr_b32 s54, s54, s53")
    e("  s_and_b32 s54, s54, 63")
    est()
    e("  s_mov_b32 s97, 0")
    e(f"{lab('wdone')}:")
    e(f"  ds_read_b32 v{vT3}, v{vTA} offset:4")
    e("  s_waitcnt lgkmcnt(0)")
    e(f"  v_readfirstlane_b32 s44, v{vT3}")
    e("  s_nop 3")
    e(f"  s_cmp_ge_u32 s44, {W}")
    e(f"  s_cbranch_scc1 {lab('alldone')}")
    e("  s_cmp_eq_u32 s54, 0")
    e(f"  s_cbranch_scc1 {lab('wdone')}")
    e("  s_cmp_lg_u32 s97, 0")
    e(f"  s_cbranch_scc1 {lab('wdone')}")
    e(f"  s_cmp_ge_u32 s44, {W-1}")
    e(f"  s_cbranch_scc1 {lab('wdone')}")
    e(f"  buffer_load_dwordx4 v[{vST}:{vST+3}], v{vFA}, s[28:31], s51 offen sc1")
    e("  s_waitcnt vmcnt(0)")
    e(f"  v_and_b32 v{vT2}, 63, v{vST+3}")
    e(f"  v_cmp_ne_u32 vcc, s54, v{vT2}")
    e("  s_nop 1")
    e("  s_and_b64 vcc, vcc, s[48:49]")
    e(f"  s_cbranch_scc1 {lab('wdone')}")
    e("  s_mov_b32 s97, 1")
    e(f"  s_branch {lab('wdone')}")
    e(f"{lab('alldone')}:")
    est()
    e("  s_cmp_eq_u32 s54, 0")
    e(f"  s_cbranch_scc1 {lab('nolook')}")
    e("  s_cmp_lg_u32 s97, 0")
    e(f"  s_cbranch_scc1 {lab('nolook')}")
    e(f"  buffer_load_dwordx4 v[{vST}:{vST+3}], v{vFA}, s[28:31], s51 offen sc1")
    e(f"{lab('nolook')}:")
    e(f"  v_min_u32 v{vT1}, 47, v{vLANE}")
    e(f"  v_lshlrev_b32 v{vT1}, 4, v{vT1}      ; chunk*16")
    e(f"  v_mov_b32 v{vT0}, 0")
    R0 = X
    O0 = (X + 4 * W + 3) // 4 * 4
    need = O0 + 8 * W
    for w in range(W):
        for h in range(2):
            e(f"  ds_read_b64 v[{R0+4*w+2*h}:{R0+4*w+2*h+1}], v{vT0} offset:{w*REC + h*800 + 768}")
    for w in range(W):
        for h in range(2):
            r = O0 + (w * 2 + h) * 4
            e(f"  ds_read_b128 v[{r}:{r+3}], v{vT1} offset:{w*REC + h*800}")
    e(f"  s_waitcnt lgkmcnt({0 if estamp else 2*W})")
    rO = vD; rM = vM; rL = vAL
    e(f"  v_max_f32 v{rM}, v{R0+1}, v{R0+5}")
    for w in range(2, W): e(f"  v_max_f32 v{rM}, v{rM}, v{R0+4*w+1}")
    for w in range(W):
        e(f"  v_sub_f32 v{R0+4*w+1}, v{R0+4*w+1}, v{rM}")
        e(f"  v_add_f32 v{R0+4*w}, v{R0+4*w}, v{R0+4*w+2}      ; l halves")
    for w in range(W): e(f"  v_mul_f32 v{R0+4*w+1}, s40, v{R0+4*w+1}")
    for w in range(W): e(f"  v_exp_f32 v{R0+4*w+1}, v{R0+4*w+1}")
    e("  s_waitcnt lgkmcnt(0)")
    for w in range(W):
        for j in range(4): e(f"  v_add_f32 v{O0+w*8+j}, v{O0+w*8+j}, v{O0+w*8+4+j}")
    e(f"  v_mul_f32 v{rL}, v{R0+1}, v{R0}")
    for j in range(4): e(f"  v_mul_f32 v{rO+j}, v{R0+1}, v{O0+j}")
    for w in range(1, W):
        e(f"  v_fmac_f32 v{rL}, v{R0+4*w+1}, v{R0+4*w}")
        for j in range(4): e(f"  v_fmac_f32 v{rO+j}, v{R0+4*w+1}, v{O0+w*8+j}")
    est()
    e("  s_cmp_lg_u32 s54, 0")
    e(f"  s_cbranch_scc1 {lab('merge')}")
    e(f"  v_cmp_eq_u32 vcc, 48, v{vLANE}")
    e(f"  v_and_b32 v{O0+3}, 0xffffffc0, v{rO+3}")
    e(f"  v_mov_b32 v{O0+2}, v{rO+2}")
    e(f"  v_cndmask_b32 v{O0}, v{rO}, v{rM}, vcc")
    e(f"  v_cndmask_b32 v{O0+1}, v{rO+1}, v{rL}, vcc")
    e(f"  v_or_b32 v{O0+3}, s52, v{O0+3}")
    e("  s_mov_b64 exec, s[48:49]")
    e(f"  buffer_store_dwordx4 v[{O0}:{O0+3}], v{vFA}, s[28:31], s50 offen sc1")
    e("  s_mov_b64 exec, -1")
    e(f"  s_branch {lab('fin')}")
    e(f"{lab('merge')}:")
    e("  s_waitcnt vmcnt(0)")
    e(f"{lab('check')}:")
    e(f"  v_and_b32 v{vT2}, 63, v{vST+3}")
    e(f"  v_cmp_ne_u32 vcc, s54, v{vT2}")
    e("  s_nop 1")
    e("  s_and_b64 vcc, vcc, s[48:49]")
    e(f"  s_cbranch_scc0 {lab('valid')}")
    e(f"  buffer_load_dwordx4 v[{vST}:{vST+3}], v{vFA}, s[28:31], s51 offen sc1")
    e("  s_waitcnt vmcnt(0)")
    e(f"  s_branch {lab('check')}")
    e(f"{lab('valid')}:")
    est()
    e(f"  v_readlane_b32 s58, v{vST}, 48         ; partner M")
    e(f"  v_readlane_b32 s59, v{vST+1}, 48       ; partner L")
    e("  s_nop 1")
    e(f"  v_max_f32 v{vT0}, s58, v{rM}")
    e(f"  v_sub_f32 v{vT1}, v{rM}, v{vT0}")
    e(f"  v_sub_f32 v{vT2}, s58, v{vT0}")
    e(f"  v_mul_f32 v{vT1}, s40, v{vT1}")
    e(f"  v_mul_f32 v{vT2}, s40, v{vT2}")
    e(f"  v_exp_f32 v{vT1}, v{vT1}")
    e(f"  v_exp_f32 v{vT2}, v{vT2}")
    e("  s_nop 0")
    e(f"  v_mul_f32 v{rL}, v{vT1}, v{rL}")
    for j in range(4): e(f"  v_mul_f32 v{rO+j}, v{vT1}, v{rO+j}")
    e(f"  v_fmac_f32 v{rL}, s59, v{vT2}")
    for j in range(4): e(f"  v_fmac_f32 v{rO+j}, v{vT2}, v{vST+j}")
    e(f"  v_rcp_f32 v{rL}, v{rL}")
    e("  s_nop 0")
    for j in range(4): e(f"  v_mul_f32 v{rO+j}, v{rO+j}, v{rL}")
    e(f"  v_cvt_pk_bf16_f32 v{vD+4}, v{rO}, v{rO+1}")
    e(f"  v_cvt_pk_bf16_f32 v{vD+5}, v{rO+2}, v{rO+3}")
    e(f"  v_lshlrev_b32 v{vT2}, 3, v{vLANE}")
    e(f"  v_cmp_gt_u32 vcc, 48, v{vLANE}")
    e("  s_and_saveexec_b64 s[48:49], vcc")
    e(f"  buffer_store_dwordx2 v[{vD+4}:{vD+5}], v{vT2}, s[20:23], s45 offen")
    e("  s_mov_b64 exec, s[48:49]")
    e(f"{lab('fin')}:")
    if estamp:
        e("  s_mov_b64 exec, -1")
        e("  s_waitcnt vmcnt(0)")
        e("  s_memrealtime s[90:91]")
        e("  s_waitcnt lgkmcnt(0)")
        e(f"  v_mov_b32 v20, 0")
        for i in range(12): e(f"  v_writelane_b32 v20, s{60+2*i}, {i}")
        e(f"  v_writelane_b32 v20, s90, 15")
        e(f"  s_lshl_b32 s46, s2, 6")
        e(f"  s_add_u32 s46, s46, 0x2A000000")
        e(f"  v_lshlrev_b32 v21, 2, v{vLANE}")
        e(f"  v_cmp_gt_u32 vcc, 16, v{vLANE}")
        e(f"  s_and_saveexec_b64 s[48:49], vcc")
        e(f"  buffer_store_dword v20, v21, s[28:31], s46 offen")
        e(f"  s_mov_b64 exec, s[48:49]")
    if stamp:
        e("  s_mov_b64 exec, -1")
        e("  s_waitcnt vmcnt(0)")
        e("  s_memrealtime s[92:93]")
        e("  s_waitcnt lgkmcnt(0)")
        e("  s_lshl_b32 s44, s2, 4")
        e("  s_add_u32 s44, s44, 0x28000000")
        e("  v_mov_b32 v8, s56")
        e("  v_mov_b32 v9, s57")
        e("  v_mov_b32 v10, s92")
        e("  v_mov_b32 v11, s93")
        e("  v_mov_b32 v12, 0")
        e("  s_mov_b64 exec, 1")
        e("  buffer_store_dwordx4 v[8:11], v12, s[28:31], s44 offen")
    e(f"{lab('end')}:")
    e("  s_endpgm")
    L = [x for x in L if x is not None]
    nv = max(X, need)
    return head(name) + "\n".join(L) + "\n" + kd(name, nv, 100), (name, nv, 100, (W + 1) * 64), (NWG, (W + 1) * 64, lds)

if __name__ == "__main__":
    if sys.argv[1] == "--final":
        v = json.loads(sys.argv[3])
        t, k, (g, b, lds) = gen(NAME, **v)
        text = HDR + f"; @launch grid=({g},1,1) block=({b},1,1) lds={lds}\n" + '.amdgcn_target "amdgcn-amd-amdhsa--gfx950"\n' + t
        open(sys.argv[2], "w").write(text)
        print("vgprs", k[1])
    else:
        variants = json.loads(sys.argv[2])
        text = '.amdgcn_target "amdgcn-amd-amdhsa--gfx950"\n'
        ks = []; specs = []
        for i, v in enumerate(variants):
            nm = v.pop("name", f"k{i}") + "_kernel"
            t, k, (g, b, lds) = gen(nm, **v)
            text += t; ks.append(k); specs.append(f"{nm},{g},{b},{lds}")
        co = build(sys.argv[1], text, ks)
        print(" ".join(f"{co.split('/')[-1]}:{s}" for s in specs))
```

```python
import sys
from asmlib import *

def gen(name, NWG=256, W=8, T=2, R=4, pat="group", flags="", kv="alt", mode="reg", vg=None, stamp=True, lanepat="seg"):
    total_keys = 128 * 4096
    keys_wg = total_keys // NWG
    groups_wg = keys_wg // 8
    gpw = groups_wg // W
    nunits = 2 * gpw // T
    assert gpw % T == 0 and nunits % R == 0
    niter = nunits // R
    G = 3072
    if pat == "group":
        A, C, Bs = G, W * G, T * W * G
    elif pat == "unit":
        A, C, Bs = T * G, G, T * W * G
    elif pat == "contig":
        A, C, Bs = gpw * G, G, T * G
    chunk = keys_wg * 384
    L = []
    e = L.append
    e(f"  s_cmp_ge_u32 s2, {NWG}")
    e("  s_cbranch_scc1 L_end_" + name)
    e("  s_load_dwordx4 s[4:7], s[0:1], 8     ; k, v")
    e("  s_load_dwordx2 s[20:21], s[0:1], 40  ; ws")
    if stamp:
        e("  s_memrealtime s[24:25]")
    e("  v_lshrrev_b32 v1, 6, v0        ; wave")
    e("  v_and_b32 v2, 63, v0           ; lane")
    if lanepat == "seg":
        e("  v_lshrrev_b32 v3, 3, v2")
        e("  v_mul_u32_u24 v3, 384, v3")
        e("  v_and_b32 v4, 7, v2")
        e("  v_lshlrev_b32 v4, 4, v4")
        e("  v_add_u32 v3, v3, v4")
        segoff = [0, 128, 256]
    else:
        e("  v_lshlrev_b32 v3, 4, v2")
        segoff = [0, 1024, 2048]
    e(f"  s_mov_b32 s22, {A}")
    e("  v_mul_lo_u32 v1, v1, s22")
    e("  v_add_u32 v1, v1, v3           ; voffset")
    e("  s_waitcnt lgkmcnt(0)")
    e(f"  s_mul_i32 s16, s2, {chunk}")
    e(f"  s_mul_hi_u32 s17, s2, {chunk}")
    e("  s_add_u32 s8, s4, s16")
    e("  s_addc_u32 s9, s5, s17")
    e(f"  s_mov_b32 s10, {chunk}")
    e("  s_mov_b32 s11, 0x20000")
    e("  s_add_u32 s12, s6, s16")
    e("  s_addc_u32 s13, s7, s17")
    e(f"  s_mov_b32 s14, {chunk}")
    e("  s_mov_b32 s15, 0x20000")
    B0 = 8
    nl = 3 * T
    if mode == "lds":
        e("  v_lshrrev_b32 v5, 6, v0")
        e("  s_nop 0")
        e("  v_readfirstlane_b32 s26, v5")
        e(f"  s_mul_i32 s26, s26, {R * nl * 1024}")
    def unit_info_static(u):
        if kv == "alt":
            return (u & 1, u >> 1)
        else:
            h = nunits // 2
            return (0, u) if u < h else (1, u - h)
    def issue(slot, srd, soff_base, tile_add):
        for t in range(T):
            e(f"  s_add_u32 s19, {soff_base}, {tile_add * Bs + t * C}")
            for s in range(3):
                if mode == "reg":
                    r = B0 + (slot * nl + t * 3 + s) * 4
                    e(f"  buffer_load_dwordx4 v[{r}:{r+3}], v1, s[{srd}:{srd+3}], s19 offen offset:{segoff[s]} {flags}")
                else:
                    e(f"  s_add_u32 m0, s26, {(slot * nl + t * 3 + s) * 1024 - segoff[s]}")
                    e(f"  s_nop 0")
                    e(f"  buffer_load_dwordx4 v1, s[{srd}:{srd+3}], s19 offen offset:{segoff[s]} {flags} lds")
    def consume(slot):
        if mode == "reg":
            for i in range(nl):
                r = B0 + (slot * nl + i) * 4
                e(f"  v_xor_b32 v6, v6, v{r}")
    e("  v_mov_b32 v6, 0")
    if kv == "alt":
        assert R % 2 == 0
        e("  s_mov_b32 s18, 0")
        for r in range(R):
            issue(r, 8 if r % 2 == 0 else 12, "s18", r // 2)
        if niter > 1:
            e(f"  s_mov_b32 s23, {niter - 1}")
            e(f"L_loop_{name}:")
            e(f"  s_add_u32 s18, s18, {(R // 2) * Bs}")
            for r in range(R):
                e(f"  s_waitcnt vmcnt({min(63,(R - 1) * nl)})")
                consume(r)
                issue(r, 8 if r % 2 == 0 else 12, "s18", r // 2)
            e("  s_sub_u32 s23, s23, 1")
            e("  s_cmp_lg_u32 s23, 0")
            e(f"  s_cbranch_scc1 L_loop_{name}")
        for r in range(R):
            e(f"  s_waitcnt vmcnt({min(63,(R - 1 - r) * nl)})")
            consume(r)
    else:
        h = nunits // 2
        assert h % R == 0
        nit = h // R
        e("  s_mov_b32 s18, 0")
        for r in range(R):
            issue(r, 8, "s18", r)
        if nit > 1:
            e(f"  s_mov_b32 s23, {nit - 1}")
            e(f"L_loopk_{name}:")
            e(f"  s_add_u32 s18, s18, {R * Bs}")
            for r in range(R):
                e(f"  s_waitcnt vmcnt({min(63,(R - 1) * nl)})")
                consume(r)
                issue(r, 8, "s18", r)
            e("  s_sub_u32 s23, s23, 1")
            e("  s_cmp_lg_u32 s23, 0")
            e(f"  s_cbranch_scc1 L_loopk_{name}")
        e("  s_mov_b32 s18, 0")
        for r in range(R):
            e(f"  s_waitcnt vmcnt({min(63,(R - 1) * nl)})")
            consume(r)
            issue(r, 12, "s18", r)
        if nit > 1:
            e(f"  s_mov_b32 s23, {nit - 1}")
            e(f"L_loopv_{name}:")
            e(f"  s_add_u32 s18, s18, {R * Bs}")
            for r in range(R):
                e(f"  s_waitcnt vmcnt({min(63,(R - 1) * nl)})")
                consume(r)
                issue(r, 12, "s18", r)
            e("  s_sub_u32 s23, s23, 1")
            e("  s_cmp_lg_u32 s23, 0")
            e(f"  s_cbranch_scc1 L_loopv_{name}")
        for r in range(R):
            e(f"  s_waitcnt vmcnt({min(63,(R - 1 - r) * nl)})")
            consume(r)
    if stamp:
        e("  s_barrier")
        e("  s_memrealtime s[26:27]")
        e("  s_waitcnt lgkmcnt(0)")
        e("  v_cmp_eq_u32 vcc, 0, v0")
        e("  s_and_saveexec_b64 s[28:29], vcc")
        e(f"  s_cbranch_execz L_end_{name}")
        e("  s_lshl_b32 s16, s2, 4")
        e("  s_add_u32 s16, s16, 0x28000000")
        e("  s_add_u32 s20, s20, s16")
        e("  s_addc_u32 s21, s21, 0")
        e("  v_mov_b32 v8, s24")
        e("  v_mov_b32 v9, s25")
        e("  v_mov_b32 v10, s26")
        e("  v_mov_b32 v11, s27")
        e("  v_mov_b32 v12, 0")
        e("  global_store_dwordx4 v12, v[8:11], s[20:21]")
    e(f"L_end_{name}:")
    e("  s_endpgm")
    nv = B0 + (R * nl * 4 if mode == "reg" else 8)
    nv = max(nv, 16)
    if vg: nv = max(nv, vg)
    lds = W * R * nl * 1024 if mode == "lds" else 0
    return head(name) + "\n".join(L) + "\n" + kd(name, nv, 40), (name, nv, 40, W * 64), f"{name},{NWG},{W*64},{lds}"

if __name__ == "__main__":
    import json
    variants = json.loads(sys.argv[2])
    text = '.amdgcn_target "amdgcn-amd-amdhsa--gfx950"\n'
    ks = []; specs = []
    for i, v in enumerate(variants):
        nm = v.pop("name", f"k{i}") + "_kernel"
        t, k, sp = gen(nm, **v)
        text += t; ks.append(k); specs.append(sp)
    co = build(sys.argv[1], text, ks)
    print(" ".join(f"{co.split('/')[-1]}:{s}" for s in specs))
```

```python
import sys, json, math, struct
from asmlib import *

NAME = "standalone__softmax_full_bidir__decode_kernel"
HDR = """; Kernarg layout for this problem (48 bytes, ptrs only, base s[0:1]):
"""
KBYTES = 128 * 4096 * 384
WSBYTES = 805306368

def gen(name=NAME, W=4, D=0, flags="nt", stamp=False, rot=1, vrot=None, ldsmin=84000, pair=4, estamp=False):
    NWG = 256; GB = 3072
    head_bytes = 4096 * 384
    NT = 256
    cscale = (192 ** -0.5) * math.log2(math.e)
    cbits = struct.unpack("<I", struct.pack("<f", cscale))[0]
    SC = 0
    REC = 1600
    R_BASE = 8192
    CTR = R_BASE + W * REC
    MX = CTR + 16
    assert W <= 6
    lds = max(MX + 64, ldsmin)
    END = 2 * NT
    ZONE = END - W * D
    vOFF = 1; vLANE = 2
    vT0, vT1, vT2, vT3 = 3, 4, 5, 6
    vM = 7; vAL = 8; vMC = 9
    vFA = 10; vLM = 12; vAT = 14; vTK = 15
    vMASK = 16; vONE = 20; vD = 24; vQ = 40
    vP = {"A": 52, "B": 88}
    vS, vS2, vS3 = 56, 57, 58
    vTA = 59
    vST = 60
    vBUF = {"A": 64, "B": 76}
    vSA = 92
    vB = 96
    nv = vB + 16 * D
    sT = {"A": "s46", "B": "s47"}
    X = 64
    L = []; e = L.append
    lab = lambda s: f"L_{s}" if name == NAME else f"L_{s}_{name}"
    def c(t): e(f"  ; {t}")
    ecount = [0]
    def est():
        if estamp:
            i = ecount[0]; ecount[0] += 1
            e(f"  s_memrealtime s[{62+2*i}:{63+2*i}]")

    c("workgroups past the 256 that carry work leave at once")
    e(f"  s_cmp_ge_u32 s2, {NWG}")
    e(f"  s_cbranch_scc1 {lab('end')}")
    c("kernarg pointers go straight into words 0-1 of their buffer descriptors")
    e("  s_load_dwordx2 s[8:9], s[0:1], 8       ; k")
    e("  s_load_dwordx2 s[16:17], s[0:1], 0     ; q")
    e("  s_load_dwordx2 s[12:13], s[0:1], 16    ; v")
    e("  s_load_dwordx2 s[20:21], s[0:1], 24    ; out")
    e("  s_load_dwordx2 s[24:25], s[0:1], 32    ; debug")
    e("  s_load_dwordx2 s[28:29], s[0:1], 40    ; ws")
    if stamp:
        e("  s_memrealtime s[60:61]")
    if estamp:
        for i in range(1, 12): e(f"  s_mov_b32 s{62+2*i}, 0")
    est()
    e(f"  v_lshrrev_b32 v{vT0}, 6, v0          ; wave")
    e(f"  v_and_b32 v{vLANE}, 63, v0           ; lane")
    e(f"  v_readfirstlane_b32 s32, v{vT0}      ; s32 = wave")
    e(f"  v_lshrrev_b32 v{vT1}, 3, v{vLANE}")
    e(f"  v_lshlrev_b32 v{vSA}, 2, v{vT1}      ; key*4")
    e(f"  v_mul_u32_u24 v{vT1}, 384, v{vT1}")
    e(f"  v_and_b32 v{vT2}, 7, v{vLANE}        ; 16-byte chunk c = lane%8")
    e(f"  v_lshlrev_b32 v{vT3}, 4, v{vT2}      ; c*16")
    e(f"  v_add_u32 v{vOFF}, v{vT1}, v{vT3}")
    lp = pair.bit_length() - 1
    c(f"head s33 and member s34: the two workgroups of a head are {pair} ids apart")
    e(f"  s_lshr_b32 s33, s2, {lp+1}")
    if lp:
        e(f"  s_lshl_b32 s33, s33, {lp}")
        e(f"  s_and_b32 s44, s2, {pair-1}")
        e(f"  s_or_b32 s33, s33, s44")
    e(f"  s_bfe_u32 s34, s2, 0x{lp | (1 << 16):x}")
    for r, v in [(10, KBYTES), (11, 0x20000), (14, KBYTES), (15, 0x20000), (18, 49152), (19, 0x20000), (22, 49152), (23, 0x20000),
                 (26, 256), (27, 0x20000), (30, WSBYTES), (31, 0x20000)]:
        e(f"  s_mov_b32 s{r}, 0x{v:x}")
    e(f"  s_mul_i32 s36, s33, {head_bytes}")
    e(f"  s_mul_i32 s37, s33, {rot}")
    e(f"  s_and_b32 s37, s37, 63")
    e(f"  s_lshl_b32 s37, s37, 3")
    e(f"  s_lshl_b32 s35, s34, 2                ; member*4")
    e(f"  s_add_u32 s42, s35, s37")
    def addr_from(tk):
        e(f"  s_lshr_b32 s44, {tk}, 2")
        e(f"  s_lshl_b32 s44, s44, 3")
        e(f"  s_and_b32 s39, {tk}, 3")
        e(f"  s_add_u32 s44, s44, s39")
        e(f"  s_add_u32 s44, s44, s42")
        e(f"  s_and_b32 s44, s44, 511")
        e(f"  s_mul_i32 s44, s44, {GB}")
        e(f"  s_add_u32 s39, s44, s36")
    def issue(base, srd):
        for s in range(3):
            r = base + s * 4
            e(f"  buffer_load_dwordx4 v[{r}:{r+3}], v{vOFF}, s[{srd}:{srd+3}], s39 offen offset:{128*s} {flags}")
    addr_from("s32")
    e(f"  s_mov_b32 s43, s39")
    e(f"  s_add_u32 s41, s32, {W}")
    addr_from("s41")
    e(f"  s_lshl_b32 {sT['A']}, s32, 5")
    e(f"  s_lshl_b32 {sT['B']}, s41, 5")
    e(f"  s_mul_i32 s45, s33, 384")
    e(f"  s_lshl_b32 s50, s33, 11")
    e(f"  s_lshl_b32 s44, s34, 10")
    e(f"  s_add_u32 s50, s50, s44")
    e(f"  s_xor_b32 s51, s50, 1024")
    e(f"  v_lshlrev_b32 v{vFA}, 4, v{vLANE}      ; lane*16")
    e("  s_waitcnt lgkmcnt(0)")
    for s in range(3):
        r = vBUF["A"] + s * 4
        e(f"  buffer_load_dwordx4 v[{r}:{r+3}], v{vOFF}, s[8:11], s43 offen offset:{128*s} {flags}")
    for s in range(3):
        e(f"  buffer_load_dwordx4 v[{vQ+4*s}:{vQ+4*s+3}], v{vT3}, s[16:19], s45 offen offset:{128*s}")
    issue(vBUF["B"], 8)
    c("wave 0: read what the own record slot holds now (to pick a tag no stale granule carries), start the ticket counter")
    e(f"  v_mov_b32 v{vTK}, {2*W}")
    e(f"  v_mov_b32 v{vTA}, {CTR}")
    e("  s_cmp_lg_u32 s32, 0")
    e(f"  s_cbranch_scc1 {lab('noinit')}")
    e(f"  buffer_load_dwordx4 v[{vST}:{vST+3}], v{vFA}, s[28:31], s50 offen sc1")
    e(f"  ds_write_b32 v{vTA}, v{vTK}")
    e("  s_waitcnt lgkmcnt(0)")
    e(f"{lab('noinit')}:")
    e("  s_barrier")
    c("A-operand masks: lane keeps p only in bf16 slot c of its 8-element row piece")
    for i in range(4): e(f"  v_mov_b32 v{vMASK+i}, 0")
    e(f"  v_and_b32 v{vT0}, 1, v{vT2}")
    e(f"  v_lshlrev_b32 v{vT0}, 4, v{vT0}")
    e(f"  v_mov_b32 v{vT1}, 0xffff")
    e(f"  v_lshlrev_b32 v{vT1}, v{vT0}, v{vT1}")
    e(f"  v_lshrrev_b32 v{vT0}, 1, v{vT2}       ; c>>1")
    for i in range(4):
        e(f"  v_cmp_eq_u32 vcc, {i}, v{vT0}")
        e(f"  v_mov_b32 v{vONE+i}, 0x3f803f80")
        e(f"  s_nop 0")
        e(f"  v_cndmask_b32 v{vMASK+i}, v{vMASK+i}, v{vT1}, vcc")
    for i in range(16): e(f"  v_mov_b32 v{vD+i}, 0")
    e(f"  v_mov_b32 v{vM}, 0xff7fffff")
    e(f"  s_mov_b32 s40, 0x{cbits:08x}         ; 192^-0.5 * log2(e)")
    e(f"  v_cmp_eq_u32 s[48:49], 0, v{vT2}")
    e(f"  s_mul_i32 s43, s32, {REC}")
    e(f"  s_add_u32 s43, s43, {R_BASE}")
    c("LDS address of this lane's accumulator piece; s[56:57] = lanes that hold useful accumulator rows")
    e(f"  v_and_b32 v{vT1}, 15, v{vLANE}        ; n")
    e(f"  v_lshrrev_b32 v{vT2}, 4, v{vLANE}")
    e(f"  v_lshrrev_b32 v{vT3}, 3, v{vT1}       ; half")
    e(f"  v_lshrrev_b32 v{vT0}, 1, v{vT2}")
    e(f"  v_cmp_eq_u32 s[56:57], v{vT3}, v{vT0}")
    e(f"  v_mul_u32_u24 v{vFA+1}, 800, v{vT3}    ; half*800")
    e(f"  v_and_b32 v{vT1}, 7, v{vT1}")
    e(f"  v_lshlrev_b32 v{vT1}, 5, v{vT1}")
    e(f"  v_and_b32 v{vT2}, 1, v{vT2}")
    e(f"  v_lshlrev_b32 v{vT2}, 4, v{vT2}")
    e(f"  v_add3_u32 v{vFA}, v{vFA+1}, v{vT1}, v{vT2}")
    e(f"  v_add_u32 v{vFA}, s43, v{vFA}")
    e(f"  v_add_u32 v{vFA+1}, s43, v{vFA+1}")

    def pop(n):
        e(f"  v_mov_b32 v{vTK}, {n}")
        e("  s_mov_b64 exec, 1")
        e(f"  ds_add_rtn_u32 v{vTK}, v{vTA}, v{vTK}")
        e("  s_mov_b64 exec, -1")
    def getticket():
        e("  s_waitcnt lgkmcnt(0)")
        e(f"  v_readfirstlane_b32 s41, v{vTK}")
        e("  s_nop 3")
    def dots(rK):
        for s in range(3):
            acc = [vS, vS2, vS3][s]
            r = rK + s * 4
            for j in range(4):
                if j == 0: e(f"  v_dot2_f32_bf16 v{acc}, v{r}, v{vQ+4*s}, 0")
                else: e(f"  v_dot2_f32_bf16 v{acc}, v{r+j}, v{vQ+4*s+j}, v{acc}")
    def score_out(b):
        e("  s_nop 2")
        e(f"  v_add_f32 v{vS2}, v{vS2}, v{vS3}")
        e(f"  v_add_f32 v{vS}, v{vS}, v{vS2}")
        for mod in ["quad_perm:[1,0,3,2]", "quad_perm:[2,3,0,1]", "row_half_mirror"]:
            e("  s_nop 1")
            e(f"  v_add_f32_dpp v{vS}, v{vS}, v{vS} {mod} row_mask:0xf bank_mask:0xf")
        e(f"  v_add_u32 v{vT0}, {sT[b]}, v{vSA}")
        e(f"  v_max_f32 v{vM}, v{vM}, v{vS}")
        e("  s_mov_b64 exec, s[48:49]")
        e(f"  ds_write_b32 v{vT0}, v{vS} offset:{SC}")
        e("  s_mov_b64 exec, -1")
    def make_p(dst, st):
        e(f"  v_add_u32 v{vT0}, {st}, v{vSA}")
        e(f"  ds_read_b32 v{vS}, v{vT0} offset:{SC}")
        e("  s_waitcnt lgkmcnt(0)")
        e(f"  v_fma_f32 v{vS}, v{vS}, s40, -v{vMC}")
        e(f"  v_exp_f32 v{vS}, v{vS}")
        e("  s_nop 0")
        e(f"  v_cvt_pk_bf16_f32 v{vS2}, v{vS}, v{vS}")
        for i in range(4): e(f"  v_and_b32 v{dst+i}, v{vS2}, v{vMASK+i}")
    def pv(rV, rP):
        for s in range(3):
            r = rV + s * 4
            e(f"  v_mfma_f32_16x16x32_bf16 v[{vD+4*s}:{vD+4*s+3}], v[{rP}:{rP+3}], v[{r}:{r+3}], v[{vD+4*s}:{vD+4*s+3}]")
        e(f"  v_mfma_f32_16x16x32_bf16 v[{vD+12}:{vD+15}], v[{rP}:{rP+3}], v[{vONE}:{vONE+3}], v[{vD+12}:{vD+15}]")
    other = {"A": "B", "B": "A"}

    c("---- phase 1: K tiles, two in flight per wave (buffers A and B)")
    e(f"{lab('k_A')}:")
    for b in ["A", "B"]:
        if b == "B": e(f"{lab('k_B')}:")
        pop(1)
        e(f"  s_waitcnt vmcnt(3)")
        dots(vBUF[b])
        getticket()
        e(f"  s_cmp_ge_u32 s41, {NT}")
        e(f"  s_cbranch_scc1 {lab('tr_'+b)}")
        addr_from("s41")
        issue(vBUF[b], 8)
        score_out(b)
        e(f"  s_lshl_b32 {sT[b]}, s41, 5")
    e(f"  s_branch {lab('k_A')}")
    c("---- the K tiles are all taken: both buffers turn to V tiles")
    for b in ["A", "B"]:
        o = other[b]
        e(f"{lab('tr_'+b)}:")
        e(f"  s_sub_u32 s41, s41, {NT}")
        addr_from("s41")
        issue(vBUF[b], 12)
        score_out(b)
        e(f"  s_lshl_b32 {sT[b]}, s41, 5")
        pop(1)
        e(f"  s_waitcnt vmcnt(3)")
        dots(vBUF[o])
        getticket()
        e(f"  s_sub_u32 s41, s41, {NT}")
        addr_from("s41")
        issue(vBUF[o], 12)
        score_out(o)
        e(f"  s_lshl_b32 {sT[o]}, s41, 5")
        e(f"  s_mov_b32 s55, {0 if b == 'A' else 1}")
        if b == "A": e(f"  s_branch {lab('mid')}")
    c("---- max of the workgroup's scores")
    e(f"{lab('mid')}:")
    est()
    e("  s_nop 1")
    e(f"  v_max_f32_dpp v{vM}, v{vM}, v{vM} row_ror:8 row_mask:0xf bank_mask:0xf")
    e(f"  v_mov_b32 v{vT1}, v{vM}")
    e("  s_nop 1")
    e(f"  v_permlane16_swap_b32 v{vM}, v{vT1}")
    e(f"  v_max_f32 v{vM}, v{vM}, v{vT1}")
    e(f"  v_mov_b32 v{vT1}, v{vM}")
    e("  s_nop 1")
    e(f"  v_permlane32_swap_b32 v{vM}, v{vT1}")
    e(f"  v_max_f32 v{vM}, v{vM}, v{vT1}")
    e(f"  s_lshl_b32 s44, s32, 2")
    e(f"  v_mov_b32 v{vT0}, s44")
    e(f"  ds_write_b32 v{vT0}, v{vM} offset:{MX}")
    e("  s_waitcnt lgkmcnt(0)")
    e("  s_barrier")
    est()
    e(f"  v_mov_b32 v{vT0}, 0")
    mregs = [vS, vS2, vS3, vT2, vT1, vT3][:W]
    for w in range(W):
        e(f"  ds_read_b32 v{mregs[w]}, v{vT0} offset:{MX + 4*w}")
    e("  s_waitcnt lgkmcnt(0)")
    e(f"  v_max_f32 v{vM}, v{mregs[0]}, v{mregs[1]}")
    for w in range(2, W): e(f"  v_max_f32 v{vM}, v{vM}, v{mregs[w]}")
    e(f"  v_mul_f32 v{vMC}, s40, v{vM}")
    make_p(vP["A"], sT["A"])
    make_p(vP["B"], sT["B"])
    if estamp: e("  s_waitcnt lgkmcnt(0)")
    est()
    e("  s_cmp_eq_u32 s55, 1")
    e(f"  s_cbranch_scc1 {lab('v_B')}")
    c("---- phase 2: V tiles")
    e(f"{lab('v_A')}:")
    for b in ["A", "B"]:
        if b == "B": e(f"{lab('v_B')}:")
        pop(1)
        e(f"  s_waitcnt vmcnt(3)")
        pv(vBUF[b], vP[b])
        getticket()
        e(f"  s_cmp_ge_u32 s41, {ZONE}")
        e(f"  s_cbranch_scc1 {lab('fin_'+b)}")
        e(f"  s_sub_u32 s41, s41, {NT}")
        addr_from("s41")
        issue(vBUF[b], 12)
        e(f"  s_lshl_b32 {sT[b]}, s41, 5")
        make_p(vP[b], sT[b])
    e(f"  s_branch {lab('v_A')}")
    for b in ["A", "B"]:
        o = other[b]
        e(f"{lab('fin_'+b)}:")
        e(f"  s_mov_b32 s55, {0 if o == 'A' else 1}")
        if b == "A": e(f"  s_branch {lab('last')}")
    e(f"{lab('last')}:")
    est()
    if D > 0:
        c(f"every wave takes {D} of the last {W*D} tiles at once")
        if D > 1: pop(D - 1)
        e(f"  s_sub_u32 s41, s41, {NT}")
        addr_from("s41")
        issue(vB, 12)
        e(f"  s_lshl_b32 s53, s41, 5")
        if D > 1:
            e("  s_waitcnt lgkmcnt(0)")
            e(f"  v_readfirstlane_b32 s54, v{vTK}")
        make_p(vB + 12, "s53")
        for d in range(1, D):
            if d == 1: e(f"  s_sub_u32 s41, s54, {NT}")
            else: e("  s_add_u32 s41, s41, 1")
            addr_from("s41")
            issue(vB + 16 * d, 12)
            e(f"  s_lshl_b32 s53, s41, 5")
            make_p(vB + 16 * d + 12, "s53")
    c("wave 0 announces the workgroup: pick a tag, OR it into the head's debug byte; the value returned tells who merges")
    e("  s_cmp_lg_u32 s32, 0")
    e(f"  s_cbranch_scc1 {lab('noann')}")
    e(f"  v_and_b32 v{vST+1}, 0xff, v{vST+1}")
    e(f"  v_and_b32 v{vST+3}, 0xff, v{vST+3}")
    e(f"  s_mov_b32 s52, 1")
    e(f"  v_cmp_gt_u32 s[48:49], 49, v{vLANE}")
    e(f"{lab('tagloop')}:")
    e(f"  v_cmp_eq_u32 vcc, s52, v{vST+1}")
    e(f"  v_cmp_eq_u32 s[58:59], s52, v{vST+3}")
    e("  s_nop 1")
    e("  s_or_b64 vcc, vcc, s[58:59]")
    e("  s_and_b64 vcc, vcc, s[48:49]")
    e(f"  s_cbranch_scc0 {lab('tagok')}")
    e("  s_add_u32 s52, s52, 1")
    e(f"  s_branch {lab('tagloop')}")
    e(f"{lab('tagok')}:")
    e("  s_and_b32 s53, s33, 1")
    e("  s_lshl_b32 s53, s53, 1")
    e("  s_add_u32 s53, s53, s34")
    e("  s_lshl_b32 s53, s53, 3")
    e("  s_lshl_b32 s54, s52, s53")
    e("  s_lshr_b32 s44, s33, 1")
    e("  s_lshl_b32 s44, s44, 2")
    e(f"  v_mov_b32 v{vAT}, s54")
    e(f"  v_mov_b32 v{vT0}, s44")
    e("  s_mov_b64 exec, 1")
    e(f"  buffer_atomic_or v{vAT}, v{vT0}, s[24:27], 0 offen sc0 sc1")
    e("  s_mov_b64 exec, -1")
    if D == 0:
        c("first look at the partner's record")
        e(f"  v_lshlrev_b32 v{vT0}, 4, v{vLANE}")
        e(f"  buffer_load_dwordx4 v[{vST}:{vST+3}], v{vT0}, s[28:31], s51 offen sc1")
        e("  s_waitcnt vmcnt(2)")
        e(f"  s_branch {lab('lastpv')}")
        e(f"{lab('noann')}:")
        e("  s_waitcnt vmcnt(0)")
        e(f"{lab('lastpv')}:")
    else:
        e(f"{lab('noann')}:")
        c("exact for waves 1-3; wave 0 has one more (younger) operation in flight, which only makes the waits stricter")
        e(f"  s_waitcnt vmcnt({3*D})")
    e("  s_cmp_eq_u32 s55, 1")
    e(f"  s_cbranch_scc1 {lab('lastB')}")
    pv(vBUF["A"], vP["A"])
    e(f"  s_branch {lab('lastdone')}")
    e(f"{lab('lastB')}:")
    pv(vBUF["B"], vP["B"])
    e(f"{lab('lastdone')}:")
    for d in range(D):
        if d == D - 1:
            e("  s_cmp_lg_u32 s32, 0")
            e(f"  s_cbranch_scc1 {lab('nospec')}")
            c("wave 0: first look at the partner's record")
            e(f"  v_lshlrev_b32 v{vT0}, 4, v{vLANE}")
            e(f"  buffer_load_dwordx4 v[{vST}:{vST+3}], v{vT0}, s[28:31], s51 offen sc1")
            e("  s_waitcnt vmcnt(2)")
            pv(vB + 16 * d, vB + 16 * d + 12)
            e(f"  s_branch {lab('flush')}")
            e(f"{lab('nospec')}:")
        e(f"  s_waitcnt vmcnt({3*(D-1-d)})")
        pv(vB + 16 * d, vB + 16 * d + 12)
    c("---- every wave leaves (sum, accumulator) in LDS")
    e(f"{lab('flush')}:")
    est()
    e("  s_nop 7")
    e("  s_mov_b64 exec, s[56:57]")
    for s in range(3):
        e(f"  ds_write_b128 v{vFA}, v[{vD+4*s}:{vD+4*s+3}] offset:{256*s}")
    e(f"  ds_write_b32 v{vFA+1}, v{vD+12} offset:768")
    e("  s_mov_b64 exec, -1")
    e("  s_waitcnt lgkmcnt(0)")
    e("  s_barrier")
    est()
    e("  s_cmp_lg_u32 s32, 0")
    e(f"  s_cbranch_scc1 {lab('end')}")
    c("---- wave 0 adds the waves up: lane i < 48 owns output columns 4i..4i+3")
    e(f"  v_min_u32 v{vT1}, 47, v{vLANE}")
    e(f"  v_lshlrev_b32 v{vT1}, 4, v{vT1}      ; chunk*16")
    e(f"  v_mov_b32 v{vT0}, 0")
    R0 = X
    O0 = X + 2 * W
    O0 = (O0 + 3) // 4 * 4
    need = O0 + 8 * W
    for w in range(W):
        for h in range(2):
            e(f"  ds_read_b32 v{R0+2*w+h}, v{vT0} offset:{R_BASE + w*REC + h*800 + 768}")
    for w in range(W):
        for h in range(2):
            r = O0 + (w * 2 + h) * 4
            e(f"  ds_read_b128 v[{r}:{r+3}], v{vT1} offset:{R_BASE + w*REC + h*800}")
    rO = vD; rM = vM; rL = vAL
    e(f"  s_waitcnt lgkmcnt({0 if (estamp or 2*W > 15) else 2*W})")
    e(f"  v_add_f32 v{rL}, v{R0}, v{R0+1}")
    for i in range(2, 2 * W): e(f"  v_add_f32 v{rL}, v{rL}, v{R0+i}")
    e("  s_waitcnt lgkmcnt(0)")
    for j in range(4): e(f"  v_add_f32 v{rO+j}, v{O0+j}, v{O0+4+j}")
    for i in range(2, 2 * W):
        for j in range(4): e(f"  v_add_f32 v{rO+j}, v{rO+j}, v{O0+4*i+j}")
    e("  s_waitcnt vmcnt(0)")
    e(f"  v_readfirstlane_b32 s54, v{vAT}")
    e("  s_xor_b32 s53, s53, 8")
    e("  s_nop 2")
    e("  s_lshr_b32 s54, s54, s53")
    e("  s_and_b32 s54, s54, 0xff")
    e("  s_cmp_lg_u32 s54, 0")
    e(f"  s_cbranch_scc1 {lab('check')}")
    c("---- first of the pair: publish the record, both 8-byte halves of every 16-byte piece tagged, and leave")
    e(f"  v_cmp_eq_u32 vcc, 48, v{vLANE}")
    e(f"  v_and_b32 v{O0+3}, 0xffffff00, v{rO+3}")
    e(f"  v_lshlrev_b32 v{vT0}, 4, v{vLANE}")
    e(f"  v_cndmask_b32 v{O0}, v{rO}, v{rM}, vcc")
    e(f"  v_cndmask_b32 v{O0+1}, v{rO+1}, v{rL}, vcc")
    e(f"  v_mov_b32 v{O0+2}, v{rO+2}")
    e(f"  v_and_b32 v{O0+1}, 0xffffff00, v{O0+1}")
    e(f"  v_or_b32 v{O0+3}, s52, v{O0+3}")
    e(f"  v_or_b32 v{O0+1}, s52, v{O0+1}")
    e("  s_mov_b64 exec, s[48:49]")
    e(f"  buffer_store_dwordx4 v[{O0}:{O0+3}], v{vT0}, s[28:31], s50 offen sc1")
    e("  s_mov_b64 exec, -1")
    e(f"  s_branch {lab('fin')}")
    c("---- second of the pair: wait until every piece of the partner's record carries its tag, merge, normalise, store")
    e(f"{lab('check')}:")
    e(f"  v_and_b32 v{vT2}, 0xff, v{vST+3}")
    e(f"  v_and_b32 v{vT3}, 0xff, v{vST+1}")
    e(f"  v_cmp_ne_u32 vcc, s54, v{vT2}")
    e(f"  v_cmp_ne_u32 s[58:59], s54, v{vT3}")
    e("  s_nop 1")
    e("  s_or_b64 vcc, vcc, s[58:59]")
    e("  s_and_b64 vcc, vcc, s[48:49]")
    e(f"  s_cbranch_scc0 {lab('valid')}")
    e(f"  v_lshlrev_b32 v{vT0}, 4, v{vLANE}")
    e(f"  buffer_load_dwordx4 v[{vST}:{vST+3}], v{vT0}, s[28:31], s51 offen sc1")
    e("  s_waitcnt vmcnt(0)")
    e(f"  s_branch {lab('check')}")
    e(f"{lab('valid')}:")
    est()
    e(f"  v_readlane_b32 s58, v{vST}, 48")
    e(f"  v_readlane_b32 s59, v{vST+1}, 48")
    e("  s_nop 1")
    e(f"  v_max_f32 v{vT0}, s58, v{rM}")
    e(f"  v_sub_f32 v{vT1}, v{rM}, v{vT0}")
    e(f"  v_sub_f32 v{vT2}, s58, v{vT0}")
    e(f"  v_mul_f32 v{vT1}, s40, v{vT1}")
    e(f"  v_mul_f32 v{vT2}, s40, v{vT2}")
    e(f"  v_exp_f32 v{vT1}, v{vT1}")
    e(f"  v_exp_f32 v{vT2}, v{vT2}")
    e("  s_nop 0")
    e(f"  v_mul_f32 v{rL}, v{vT1}, v{rL}")
    for j in range(4): e(f"  v_mul_f32 v{rO+j}, v{vT1}, v{rO+j}")
    e(f"  v_fmac_f32 v{rL}, s59, v{vT2}")
    for j in range(4): e(f"  v_fmac_f32 v{rO+j}, v{vT2}, v{vST+j}")
    e(f"  v_rcp_f32 v{rL}, v{rL}")
    e("  s_nop 0")
    for j in range(4): e(f"  v_mul_f32 v{rO+j}, v{rO+j}, v{rL}")
    e(f"  v_cvt_pk_bf16_f32 v{vD+4}, v{rO}, v{rO+1}")
    e(f"  v_cvt_pk_bf16_f32 v{vD+5}, v{rO+2}, v{rO+3}")
    e(f"  v_lshlrev_b32 v{vT2}, 3, v{vLANE}")
    e(f"  v_cmp_gt_u32 vcc, 48, v{vLANE}")
    e("  s_and_saveexec_b64 s[48:49], vcc")
    e(f"  buffer_store_dwordx2 v[{vD+4}:{vD+5}], v{vT2}, s[20:23], s45 offen")
    e("  s_mov_b64 exec, s[48:49]")
    e(f"{lab('fin')}:")
    if estamp:
        e("  s_mov_b64 exec, -1")
        e("  s_waitcnt vmcnt(0)")
        e("  s_memrealtime s[90:91]")
        e("  s_waitcnt lgkmcnt(0)")
        e(f"  v_mov_b32 v20, 0")
        for i in range(12): e(f"  v_writelane_b32 v20, s{62+2*i}, {i}")
        e(f"  v_writelane_b32 v20, s90, 15")
        e(f"  s_lshl_b32 s46, s2, 6")
        e(f"  s_add_u32 s46, s46, 0x2A000000")
        e(f"  v_lshlrev_b32 v21, 2, v{vLANE}")
        e(f"  v_cmp_gt_u32 vcc, 16, v{vLANE}")
        e(f"  s_and_saveexec_b64 s[48:49], vcc")
        e(f"  buffer_store_dword v20, v21, s[28:31], s46 offen")
        e(f"  s_mov_b64 exec, s[48:49]")
    if stamp:
        e("  s_mov_b64 exec, -1")
        e("  s_waitcnt vmcnt(0)")
        e("  s_memrealtime s[92:93]")
        e("  s_waitcnt lgkmcnt(0)")
        e("  s_lshl_b32 s44, s2, 4")
        e("  s_add_u32 s44, s44, 0x28000000")
        e("  v_mov_b32 v8, s60")
        e("  v_mov_b32 v9, s61")
        e("  v_mov_b32 v10, s92")
        e("  v_mov_b32 v11, s93")
        e("  v_mov_b32 v12, 0")
        e("  s_mov_b64 exec, 1")
        e("  buffer_store_dwordx4 v[8:11], v12, s[28:31], s44 offen")
    e(f"{lab('end')}:")
    e("  s_endpgm")
    L = [x for x in L if x is not None]
    nv = max(nv, need)
    nsg = 100 if stamp else 60
    return head(name) + "\n".join(L) + "\n" + kd(name, nv, nsg), (name, nv, nsg, W * 64), (NWG, W * 64, lds)

if __name__ == "__main__":
    if sys.argv[1] == "--final":
        v = json.loads(sys.argv[3])
        t, k, (g, b, lds) = gen(NAME, **v)
        text = HDR + f"; @launch grid=({g},1,1) block=({b},1,1) lds={lds}\n" + '.amdgcn_target "amdgcn-amd-amdhsa--gfx950"\n' + t
        open(sys.argv[2], "w").write(text)
        print("vgprs", k[1])
    else:
        variants = json.loads(sys.argv[2])
        text = '.amdgcn_target "amdgcn-amd-amdhsa--gfx950"\n'
        ks = []; specs = []
        for i, v in enumerate(variants):
            nm = v.pop("name", f"k{i}") + "_kernel"
            t, k, (g, b, lds) = gen(nm, **v)
            text += t; ks.append(k); specs.append(f"{nm},{g},{b},{lds}")
        co = build(sys.argv[1], text, ks)
        print(" ".join(f"{co.split('/')[-1]}:{s}" for s in specs))
```

```python
import sys, json
from asmlib import *
def gen(name, G=2, rot=1, mode="seq", memb="xor4", flags="nt", perhead=False):
    GB = 3072; head_bytes = 4096 * 384; KB_ = 128 * head_bytes
    HP = G // 2
    lg = G.bit_length() - 1
    per = 512 // G
    L = []; e = L.append
    lab = lambda s: f"L_{s}_{name}"
    e("  s_cmp_ge_u32 s2, 256")
    e(f"  s_cbranch_scc1 {lab('end')}")
    e("  s_load_dwordx2 s[8:9], s[0:1], 8")
    e("  s_load_dwordx2 s[12:13], s[0:1], 16")
    e("  v_lshrrev_b32 v3, 6, v0")
    e("  v_and_b32 v2, 63, v0")
    e("  v_readfirstlane_b32 s32, v3")
    e("  v_lshrrev_b32 v4, 3, v2")
    e("  v_mul_u32_u24 v4, 384, v4")
    e("  v_and_b32 v5, 7, v2")
    e("  v_lshlrev_b32 v6, 4, v5")
    e("  v_add_u32 v1, v4, v6")
    if G == 2:
        e("  s_lshr_b32 s33, s2, 3")
        e("  s_lshl_b32 s33, s33, 2")
        e("  s_and_b32 s44, s2, 3")
        e("  s_or_b32 s33, s33, s44")
        e("  s_bfe_u32 s34, s2, 0x10002")
    else:
        e(f"  s_lshr_b32 s33, s2, {lg}      ; group")
        e(f"  s_and_b32 s34, s2, {G-1}      ; member")
    for r, v in [(10, KB_), (11, 0x20000), (14, KB_), (15, 0x20000)]: e(f"  s_mov_b32 s{r}, 0x{v:x}")
    ng = 256 // G
    if perhead:
        e(f"  s_mul_i32 s36, s33, {head_bytes}")
        hstep = ng * head_bytes
    else:
        e(f"  s_mul_i32 s36, s33, {HP * head_bytes}")
        hstep = head_bytes
    e(f"  s_mul_i32 s37, s33, {rot}")
    e(f"  s_mul_i32 s37, s37, {4*G}")
    e("  s_and_b32 s37, s37, 511")
    e("  s_lshl_b32 s35, s34, 2")
    e("  s_add_u32 s42, s35, s37")
    def addr(tk):
        e(f"  s_lshr_b32 s45, {tk}, {per.bit_length()-1}")
        e(f"  s_and_b32 s46, {tk}, {per-1}")
        e(f"  s_lshr_b32 s44, s46, 2")
        e(f"  s_mul_i32 s44, s44, {4*G}")
        e(f"  s_and_b32 s39, s46, 3")
        e("  s_add_u32 s44, s44, s39")
        e("  s_add_u32 s44, s44, s42")
        e("  s_and_b32 s44, s44, 511")
        e(f"  s_mul_i32 s44, s44, {GB}")
        e(f"  s_mul_i32 s45, s45, {hstep}")
        e("  s_add_u32 s39, s44, s36")
        e("  s_add_u32 s39, s39, s45")
    def ld(srd, r):
        for s in range(3): e(f"  buffer_load_dwordx4 v[{r+4*s}:{r+4*s+3}], v1, s[{srd}:{srd+3}], s39 offen offset:{128*s} {flags}")
    def cons(r):
        for i in range(3): e(f"  v_xor_b32 v7, v7, v{r+4*i}")
    e("  v_mov_b32 v7, 0")
    e("  s_mov_b32 s41, s32")
    e("  s_waitcnt lgkmcnt(0)")
    A, B = 8, 20
    for ph, srd in enumerate([8, 12]):
        if ph == 0:
            addr("s41"); ld(srd, A)
            e("  s_add_u32 s41, s41, 4")
            addr("s41"); ld(srd, B)
        e("  s_mov_b32 s27, 31")
        e(f"{lab('loop%d' % ph)}:")
        e("  s_waitcnt vmcnt(3)")
        cons(A)
        e("  s_add_u32 s41, s41, 4")
        addr("s41"); ld(srd, A)
        e("  s_waitcnt vmcnt(3)")
        cons(B)
        e("  s_add_u32 s41, s41, 4")
        addr("s41"); ld(srd, B)
        e("  s_sub_u32 s27, s27, 1")
        e("  s_cmp_lg_u32 s27, 0")
        e(f"  s_cbranch_scc1 {lab('loop%d' % ph)}")
        if ph == 0:
            e("  s_waitcnt vmcnt(3)")
            cons(A)
            e("  s_mov_b32 s41, s32")
            addr("s41"); ld(12, A)
            e("  s_waitcnt vmcnt(3)")
            cons(B)
            e("  s_add_u32 s41, s41, 4")
            addr("s41"); ld(12, B)
        else:
            e("  s_waitcnt vmcnt(0)")
    e(f"{lab('end')}:")
    e("  s_endpgm")
    return head(name) + "\n".join(L) + "\n" + kd(name, 160, 48), (name, 160, 48, 256), f"{name},256,256,84000"
if __name__ == "__main__":
    variants = json.loads(sys.argv[2])
    text = '.amdgcn_target "amdgcn-amd-amdhsa--gfx950"\n'
    ks = []; specs = []
    for i, v in enumerate(variants):
        nm = v.pop("name", f"k{i}") + "_kernel"
        t, k, sp = gen(nm, **v)
        text += t; ks.append(k); specs.append(sp)
    co = build(sys.argv[1], text, ks)
    print(" ".join(f"{co.split('/')[-1]}:{s}" for s in specs))
```

```python
import sys, json
from asmlib import *
def gen(name, rot=1, il=3, scatter=0, ts=0, flags="nt"):
    GB = 3072; head_bytes = 4096 * 384
    L = []; e = L.append
    lab = lambda s: f"L_{s}_{name}"
    e("  s_cmp_ge_u32 s2, 256")
    e(f"  s_cbranch_scc1 {lab('end')}")
    e("  s_load_dwordx2 s[8:9], s[0:1], 40")
    e("  v_lshrrev_b32 v3, 6, v0")
    e("  v_and_b32 v2, 63, v0")
    e("  v_readfirstlane_b32 s32, v3")
    e("  v_lshrrev_b32 v4, 3, v2")
    e("  v_mul_u32_u24 v4, 384, v4")
    e("  v_and_b32 v5, 7, v2")
    e("  v_lshlrev_b32 v6, 4, v5")
    e("  v_add_u32 v1, v4, v6")
    e("  s_lshr_b32 s33, s2, 3")
    e("  s_lshl_b32 s33, s33, 2")
    e("  s_and_b32 s44, s2, 3")
    e("  s_or_b32 s33, s33, s44")
    e("  s_bfe_u32 s34, s2, 0x10002")
    e("  s_mov_b32 s10, 0x30000000")
    e("  s_mov_b32 s11, 0x20000")
    if scatter:
        e(f"  s_mul_i32 s36, s33, {scatter}")
        e("  s_mul_hi_u32 s44, s36, 0x1571ed4")
        e("  s_mul_i32 s44, s44, 191")
        e("  s_sub_u32 s36, s36, s44")
        e("  s_lshl_b32 s36, s36, 21")
    else:
        e(f"  s_mul_i32 s36, s33, {head_bytes}")
    e(f"  s_mul_i32 s37, s33, {rot}")
    e("  s_and_b32 s37, s37, 63")
    e("  s_lshl_b32 s37, s37, 3")
    e(f"  s_lshl_b32 s35, s34, {il}")
    e("  s_add_u32 s42, s35, s37")
    def addr(tk, vphase):
        t = tk
        if ts:
            e(f"  s_and_b32 s45, {tk}, 7")
            e("  s_lshl_b32 s45, s45, 5")
            e(f"  s_lshr_b32 s46, {tk}, 3")
            e("  s_or_b32 s45, s45, s46")
            t = "s45"
        e(f"  s_lshr_b32 s44, {t}, {il}")
        e(f"  s_lshl_b32 s44, s44, {il+1}")
        e(f"  s_and_b32 s39, {t}, {(1 << il) - 1}")
        e("  s_add_u32 s44, s44, s39")
        e("  s_add_u32 s44, s44, s42")
        e("  s_and_b32 s44, s44, 511")
        e(f"  s_mul_i32 s44, s44, {GB}")
        e("  s_add_u32 s39, s44, s36")
        if vphase: e("  s_add_u32 s39, s39, 0x18000000")
    def ld(r):
        for s in range(3): e(f"  buffer_load_dwordx4 v[{r+4*s}:{r+4*s+3}], v1, s[8:11], s39 offen offset:{128*s} {flags}")
    def cons(r):
        for i in range(3): e(f"  v_xor_b32 v7, v7, v{r+4*i}")
    e("  v_mov_b32 v7, 0")
    e("  s_mov_b32 s41, s32")
    e("  s_waitcnt lgkmcnt(0)")
    A, B = 8, 20
    for ph in range(2):
        if ph == 0:
            addr("s41", 0); ld(A)
            e("  s_add_u32 s41, s41, 4")
            addr("s41", 0); ld(B)
        e("  s_mov_b32 s27, 31")
        e(f"{lab('loop%d' % ph)}:")
        e("  s_waitcnt vmcnt(3)")
        cons(A)
        e("  s_add_u32 s41, s41, 4")
        addr("s41", ph); ld(A)
        e("  s_waitcnt vmcnt(3)")
        cons(B)
        e("  s_add_u32 s41, s41, 4")
        addr("s41", ph); ld(B)
        e("  s_sub_u32 s27, s27, 1")
        e("  s_cmp_lg_u32 s27, 0")
        e(f"  s_cbranch_scc1 {lab('loop%d' % ph)}")
        if ph == 0:
            e("  s_waitcnt vmcnt(3)")
            cons(A)
            e("  s_mov_b32 s41, s32")
            addr("s41", 1); ld(A)
            e("  s_waitcnt vmcnt(3)")
            cons(B)
            e("  s_add_u32 s41, s41, 4")
            addr("s41", 1); ld(B)
        else:
            e("  s_waitcnt vmcnt(0)")
    e(f"{lab('end')}:")
    e("  s_endpgm")
    return head(name) + "\n".join(L) + "\n" + kd(name, 160, 48), (name, 160, 48, 256), f"{name},256,256,84000"
if __name__ == "__main__":
    variants = json.loads(sys.argv[2])
    text = '.amdgcn_target "amdgcn-amd-amdhsa--gfx950"\n'
    ks = []; specs = []
    for i, v in enumerate(variants):
        nm = v.pop("name", f"k{i}") + "_kernel"
        t, k, sp = gen(nm, **v)
        text += t; ks.append(k); specs.append(sp)
    co = build(sys.argv[1], text, ks)
    print(" ".join(f"{co.split('/')[-1]}:{s}" for s in specs))
```
